```python
import torch

def _softmax(x, axis=-1):
    return torch.softmax(x, dim=axis)
def _gelu(x):
    return torch.nn.functional.gelu(x, approximate="tanh")
def _silu(x):
    return torch.nn.functional.silu(x)
def _sigmoid(x):
    return torch.sigmoid(x)
def _layernorm(x, axis=-1, eps=1e-5):
    m = x.mean(dim=axis, keepdim=True)
    v = x.var(dim=axis, keepdim=True, unbiased=False)
    return (x - m) / torch.sqrt(v + eps)
def _scatter_add(tgt, idx, src, axis=0):
    return tgt.clone().index_add_(axis, idx, src)
def _segment_sum(src, seg, n):
    out = torch.zeros((n,) + src.shape[1:], dtype=src.dtype)
    return out.index_add_(0, seg, src)
def _pad(x, pw):
    flat = tuple(v for pair in reversed(pw) for v in pair)
    return torch.nn.functional.pad(x, flat)

kernel_name = 'sequential_preLN__mha_block__glu_gated_bilinear__prompt'

def setup_inputs():

    _w = (lambda a: (lambda t: t.to(torch.bfloat16) if t.is_floating_point() else t)(torch.as_tensor(a)))
    def _A_setup():
        B, S, D, H = 1, 2048, 640, 32
        return {
            "x": _w((lambda *s: torch.randn(*s, dtype=torch.bfloat16) * 0.05)(B, S, D)),
            "wqkv": _w((lambda *s: torch.randn(*s, dtype=torch.bfloat16) * 0.05)(D, 3 * D)),
            "wo": _w((lambda *s: torch.randn(*s, dtype=torch.bfloat16) * 0.05)(D, D)),
        }
    _A_in = _A_setup()

    def _B_setup():
        B, S, D, F = 1, 2048, 640, 1536
        return {
            "x": _w((lambda *s: torch.randn(*s, dtype=torch.bfloat16) * 0.05)(B, S, D)),
            "w_gate": _w((lambda *s: torch.randn(*s, dtype=torch.bfloat16) * 0.8)(D, F) * (D ** -0.5)),
            "w_up": _w((lambda *s: torch.randn(*s, dtype=torch.bfloat16) * 0.8)(D, F) * (D ** -0.5)),
            "w_down": _w((lambda *s: torch.randn(*s, dtype=torch.bfloat16) * 0.8)(F, D) * (F ** -0.5)),
        }
    _B_in = _B_setup()

    return {
        "A_x": _A_in["x"],
        "A_wqkv": _A_in["wqkv"],
        "A_wo": _A_in["wo"],
        "B_x": _B_in["x"],
        "B_w_gate": _B_in["w_gate"],
        "B_w_up": _B_in["w_up"],
        "B_w_down": _B_in["w_down"],
    }

def reference(A_x, A_wqkv, A_wo, B_x, B_w_gate, B_w_up, B_w_down):
    def _A_ref(x, wqkv, wo):
        B, S, D = x.shape
        H = 32
        Dh = D // H
        qkv = (lambda x, *d: x.permute(*d))((x @ wqkv).reshape(B, S, 3, H, Dh), 2, 0, 3, 1, 4)
        q, k, v = qkv[0], qkv[1], qkv[2]
        scores = torch.einsum("bhqd,bhkd->bhqk", q, k) * (Dh ** -0.5)
        p = _softmax(scores, axis=-1)
        o = torch.einsum("bhqk,bhkd->bhqd", p, v)
        return (lambda x, *d: x.permute(*d))(o, 0, 2, 1, 3).reshape(B, S, D) @ wo

    def _B_ref(x, w_gate, w_up, w_down):
        g = torch.einsum("bsd,df->bsf", x, w_gate)
        u = torch.einsum("bsd,df->bsf", x, w_up)
        h = g * u
        return torch.einsum("bsf,fd->bsd", h, w_down)

    x = A_x
    h = x + _A_ref(_layernorm(x, axis=-1), A_wqkv, A_wo)
    h2 = h + _B_ref(_layernorm(h, axis=-1), B_w_gate, B_w_up, B_w_down)
    return h2
```

```python
class Kern:
    def __init__(self, name, grid, block, lds):
        self.name, self.grid, self.block, self.lds = name, grid, block, lds
        self.L = []
        self.nv = 1
        self.ns = 4
        self.na = 0
        self.maxv = 1
        self.maxs = 16
        self.uid = 0
    def __call__(self, s):
        for ln in s.strip("\n").split("\n"):
            ln = ln.strip()
            if ln:
                self.L.append(("" if ln.endswith(":") else "    ") + ln)
    def v(self, n=1, align=None):
        if align is None: align = 2 if n >= 2 else 1
        self.nv = (self.nv + align - 1) // align * align
        r = self.nv; self.nv += n
        self.maxv = max(self.maxv, self.nv)
        return r
    def vmark(self): return self.nv
    def vrelease(self, m): self.nv = m
    def a(self, n=1, align=None):
        if align is None: align = 2 if n >= 2 else 1
        self.na = (self.na + align - 1) // align * align
        r = self.na; self.na += n
        return r
    def s(self, n=1, align=None):
        if align is None: align = 4 if n >= 4 else (2 if n >= 2 else 1)
        self.ns = (self.ns + align - 1) // align * align
        r = self.ns; self.ns += n
        assert self.ns <= 100
        self.maxs = max(self.maxs, self.ns)
        return r
    def lab(self, base):
        self.uid += 1
        return f"L_{self.name[:6]}_{base}_{self.uid}"
    def srd(self, ptr_s, nbytes):
        d = self.s(4)
        self(f"""s_mov_b32 s{d}, s{ptr_s}
                 s_mov_b32 s{d+1}, s{ptr_s+1}
                 s_mov_b32 s{d+2}, {hex(nbytes)}
                 s_mov_b32 s{d+3}, 0x20000""")
        return d
    def text(self):
        out = [f".globl {self.name}", ".p2align 8", f".type {self.name},@function", f"{self.name}:"]
        out += self.L
        return "\n".join(out) + "\n"
    def desc(self):
        acc = (self.maxv + 3) // 4 * 4
        assert acc <= 256, f"{self.name}: too many arch vgprs {self.maxv}"
        nfv = acc + self.na if self.na else self.maxv
        assert nfv <= 512
        return f""".p2align 6
.amdhsa_kernel {self.name}
  .amdhsa_next_free_vgpr {nfv}
  .amdhsa_next_free_sgpr {self.maxs}
  .amdhsa_accum_offset {acc}
  .amdhsa_group_segment_fixed_size 0
  .amdhsa_kernarg_size 80
  .amdhsa_user_sgpr_count 2
  .amdhsa_user_sgpr_kernarg_segment_ptr 1
  .amdhsa_system_sgpr_workgroup_id_x 1
.end_amdhsa_kernel
"""

def vr(b, n): return f"v[{b}:{b+n-1}]" if n > 1 else f"v{b}"
def ar(b, n): return f"a[{b}:{b+n-1}]" if n > 1 else f"a{b}"
def sr(b, n): return f"s[{b}:{b+n-1}]" if n > 1 else f"s{b}"

def assemble_file(kernels, launches, header_comment=""):
    out = header_comment
    for k in launches:
        out += f"; @launch kernel={k.name} grid=({k.grid},1,1) block=({k.block},1,1) lds={k.lds}\n"
    out += '.amdgcn_target "amdgcn-amd-amdhsa--gfx950"\n.text\n'
    for k in kernels:
        out += k.text()
    out += '.section .rodata,"a"\n'
    for k in kernels:
        out += k.desc()
    return out
```

```python
import sys, math
from asmlib import *

QKA = 0
QKB = QKA + 64*65536
VF  = QKB + 64*16384
OF  = VF + 32*81920
WOF = OF + 128*20480
WGUF= WOF + 800*1024
WDF = WGUF + 3840*1024
HF  = WDF + 1920*1024
STATS = HF + 64*40960
HHF = STATS + 2048*64
WS_END0 = HHF + 128*49152
CSG = WS_END0
WS_END = CSG + 96*32*4*8
WS_SIZE = WS_END + 65536
ONES = 0x3f803f80
QSCALE = math.log2(math.e) / math.sqrt(20.0)
import struct
def f32(x): return "0x%08x" % struct.unpack("<I", struct.pack("<f", x))[0]

def wave_id(k, sw, vl):
    k(f"""v_lshrrev_b32 v{vl}, 6, v0
          s_nop 0
          v_readfirstlane_b32 s{sw}, v{vl}
          v_and_b32 v{vl}, 63, v0""")

def ln_scalars(k, s1, s2, t0, t1, negmean, rs):
    k(f"""v_mul_f32 v{s1}, {f32(1/640)}, v{s1}
          v_mul_f32 v{s2}, {f32(1/640)}, v{s2}
          v_fma_f32 v{s2}, -v{s1}, v{s1}, v{s2}
          v_max_f32 v{s2}, 0, v{s2}
          v_cvt_pk_bf16_f32 v{t0}, v{s1}, v{s2}
          v_and_b32 v{t1}, 0xffff0000, v{t0}
          v_lshlrev_b32 v{t0}, 16, v{t0}
          v_add_f32 v{t1}, {f32(1e-5)}, v{t1}
          v_sub_f32 v{negmean}, 0, v{t0}
          v_cvt_pk_bf16_f32 v{t1}, v{t1}, v{t1}
          v_and_b32 v{t1}, 0xffff0000, v{t1}
          v_sqrt_f32 v{t1}, v{t1}
          s_nop 0
          v_cvt_pk_bf16_f32 v{t1}, v{t1}, v{t1}
          v_and_b32 v{t1}, 0xffff0000, v{t1}
          v_rcp_f32 v{rs}, v{t1}
          s_nop 0""")

def xhalf_sum(k, x, t):
    k(f"""v_mov_b32 v{t}, v{x}
          s_nop 1
          v_permlane32_swap_b32 v{x}, v{t}
          s_nop 1
          v_add_f32 v{x}, v{x}, v{t}""")


def pk(op, d, a, b, c=None, sel=None, selhi=None):
    ops = [a, b] + ([c] if c else [])
    lo = [0 if m in "pl" else 1 for _, m in ops]
    hi = [1 if m in "ph" else 0 for _, m in ops]
    s = f"{op} v[{d}:{d+1}], " + ", ".join(f"v[{r}:{r+1}]" for r, _ in ops)
    s += " op_sel:[" + ",".join(map(str, lo)) + "] op_sel_hi:[" + ",".join(map(str, hi)) + "]"
    return s

def wo_col(U, j):
    if U < 64: return (U>>1)*20 + (j>>2)*8 + (U&1)*4 + (j&3)
    return (2*(U-64) + (j>>2))*20 + 16 + (j&3)
def wd_k(s, sg): return 32*s + (sg>>4)*16 + ((sg>>2)&1)*8 + ((sg>>3)&1)*4 + (sg&3)
def gu_k(s, hi, j): return 16*s + 8*hi + j
def w_feat(j5, i):
    if j5 < 4: return 32*(j5>>1) + (i>>2)*8 + (j5&1)*4 + (i&3)
    return 64 + i
```

```python
from common import *
def gen_k1(NSLOT=4):
    ST = NSLOT*32768
    k = Kern("k1_qkv_kernel", 256, 512, ST + 2048)
    sp = k.s(4); sws = k.s(2)
    smt, snt, sw, st0, st1 = k.s(), k.s(), k.s(), k.s(), k.s()
    Lend = k.lab("end"); Lload = k.lab("loader")
    vl = k.v()
    k(f"""s_load_dwordx4 s[{sp}:{sp+3}], s[0:1], 0
          s_load_dwordx2 s[{sws}:{sws+1}], s[0:1], 72
          s_cmp_ge_u32 s2, 256
          s_cbranch_scc1 {Lend}
          s_and_b32 s{smt}, s2, 3
          s_lshl_b32 s{smt}, s{smt}, 2
          s_bfe_u32 s{st0}, s2, 0x20003
          s_add_u32 s{smt}, s{smt}, s{st0}
          s_bfe_u32 s{snt}, s2, 0x10002
          s_lshl_b32 s{snt}, s{snt}, 3
          s_lshr_b32 s{st0}, s2, 5
          s_add_u32 s{snt}, s{snt}, s{st0}
          s_cmp_ge_u32 s{snt}, 15
          s_cbranch_scc1 {Lend}""")
    wave_id(k, sw, vl)
    k(f"""s_nop 3
          s_cmp_lt_u32 s{sw}, 4
          s_cbranch_scc1 L_k1_compute""")
    m = k.vmark()
    vA = [k.v() for _ in range(4)]; vB = [k.v() for _ in range(4)]
    t = [k.v() for _ in range(4)]
    slw, soA, soB, sm0 = k.s(), k.s(), k.s(), k.s()
    k(f"""s_sub_u32 s{slw}, s{sw}, 4
          s_lshl_b32 s{st0}, s{smt}, 7
          s_lshl_b32 s{st1}, s{slw}, 5
          s_add_u32 s{st0}, s{st0}, s{st1}
          v_bfe_u32 v{t[0]}, v{vl}, 2, 3
          v_add_u32 v{t[0]}, s{st0}, v{t[0]}
          s_movk_i32 s{st1}, 1280
          v_mul_lo_u32 v{t[0]}, v{t[0]}, s{st1}
          v_lshrrev_b32 v{t[1]}, 5, v{vl}
          v_lshl_add_u32 v{t[0]}, v{t[1]}, 6, v{t[0]}
          v_and_b32 v{t[1]}, 3, v{vl}""")
    for j in range(4):
        k(f"""v_xor_b32 v{t[2]}, {j}, v{t[1]}
              v_lshl_add_u32 v{vA[j]}, v{t[2]}, 4, v{t[0]}""")
        if j: k(f"v_add_u32 v{vA[j]}, {j*(10240-1024)}, v{vA[j]}")
    k(f"""s_lshl_b32 s{st0}, s{slw}, 4
          v_lshrrev_b32 v{t[0]}, 4, v{vl}
          v_lshlrev_b32 v{t[1]}, 2, v{t[0]}
          v_add_u32 v{t[0]}, s{st0}, v{t[0]}
          s_movk_i32 s{st1}, 3840
          v_mul_lo_u32 v{t[0]}, v{t[0]}, s{st1}
          v_and_b32 v{t[2]}, 15, v{vl}
          v_xor_b32 v{t[2]}, v{t[2]}, v{t[1]}
          v_lshl_add_u32 v{t[0]}, v{t[2]}, 4, v{t[0]}
          s_lshl_b32 s{st0}, s{snt}, 8
          v_add_u32 v{vB[0]}, s{st0}, v{t[0]}""")
    for j in range(1, 4):
        k(f"v_add_u32 v{vB[j]}, {j*(4*3840-1024)}, v{vB[0]}")
    k(f"""s_lshl_b32 s{sm0}, s{slw}, 12
          s_waitcnt lgkmcnt(0)""")
    dx = k.srd(sp, 2048*1280); dw = k.srd(sp+2, 640*3840)
    def issue(stage):
        slot = stage % NSLOT
        k(f"""s_add_u32 m0, s{sm0}, {slot*32768}
              s_mov_b32 s{soA}, {stage*128}
              s_mov_b32 s{soB}, {stage*64*3840}""")
        for j in range(4):
            k(f"buffer_load_dwordx4 v{vA[j]}, s[{dx}:{dx+3}], s{soA} offen offset:{j*1024} lds")
        k(f"""s_add_u32 m0, s{sm0}, {slot*32768+16384}
              s_nop 0""")
        for j in range(4):
            k(f"buffer_load_dwordx4 v{vB[j]}, s[{dw}:{dw+3}], s{soB} offen offset:{j*1024} lds")
    for s in range(NSLOT): issue(s)
    issued = NSLOT-1
    for s in range(10):
        k(f"""s_waitcnt vmcnt({8*(issued-s)})
              s_barrier""")
        if s >= 1 and s-1+NSLOT < 10:
            issue(s-1+NSLOT); issued = s-1+NSLOT
    k("s_endpgm")
    k.vrelease(m)
    k("L_k1_compute:")
    swm, swn, sslot, scnt, sscale, stile = k.s(), k.s(), k.s(), k.s(), k.s(), k.s()
    acc = [[k.v(16, 4) for nb in range(2)] for mb in range(2)]
    fx = [[k.v(4, 4) for mb in range(2)] for st in range(2)]
    fw = [[k.v(4, 4) for nb in range(2)] for st in range(2)]
    g1, g2, gc = k.v(4, 4), k.v(4, 4), k.v(4, 4)
    ones = k.v(2)
    aA = [[k.v() for p in range(2)] for mb in range(2)]; aB = [k.v() for _ in range(2)]
    bA = [[k.v() for p in range(2)] for mb in range(2)]; bB = [k.v() for _ in range(2)]
    al = aA[0]+aA[1]+aB; bl = bA[0]+bA[1]+bB
    vhi, vl31 = k.v(), k.v()
    t0_ = k.v(8); t = [t0_+i for i in range(8)]
    oaddr = k.v(16)
    k(f"""s_lshr_b32 s{swm}, s{sw}, 1
          s_and_b32 s{swn}, s{sw}, 1
          v_mov_b32 v{ones}, {hex(ONES)}
          v_mov_b32 v{ones+1}, {hex(ONES)}
          v_lshrrev_b32 v{vhi}, 5, v{vl}
          v_and_b32 v{vl31}, 31, v{vl}""")
    k(f"""s_lshl_b32 s{st0}, s{sw}, 12
          v_lshrrev_b32 v{t[1]}, 3, v{vl31}
          v_and_b32 v{t[0]}, 7, v{vl31}
          v_lshlrev_b32 v{t[0]}, 6, v{t[0]}
          v_lshl_add_u32 v{t[0]}, v{t[1]}, 10, v{t[0]}
          v_add_u32 v{t[0]}, s{st0}, v{t[0]}""")
    for p in range(2):
        k(f"""v_or_b32 v{t[2]}, {p*2}, v{vhi}
              v_xor_b32 v{t[2]}, v{t[2]}, v{t[1]}
              v_lshl_add_u32 v{bA[0][p]}, v{t[2]}, 4, v{t[0]}
              v_xor_b32 v{bA[1][p]}, 4096, v{bA[0][p]}""")
    k(f"""v_bfe_u32 v{t[0]}, v{vl}, 2, 2
          v_lshl_add_u32 v{t[1]}, v{vhi}, 3, v{t[0]}
          v_lshlrev_b32 v{t[1]}, 8, v{t[1]}
          v_and_b32 v{t[2]}, 1, v{vl}
          v_lshl_add_u32 v{t[1]}, v{t[2]}, 3, v{t[1]}
          v_add_u32 v{t[1]}, 16384, v{t[1]}
          v_bfe_u32 v{t[2]}, v{vl}, 4, 1
          v_lshlrev_b32 v{t[2]}, 1, v{t[2]}
          v_bfe_u32 v{t[3]}, v{vl}, 1, 1
          v_or_b32 v{t[2]}, v{t[2]}, v{t[3]}
          s_lshl_b32 s{st0}, s{swn}, 1
          s_add_u32 s{st0}, s{st0}, s{swm}
          s_lshl_b32 s{st1}, s{st0}, 2
          v_or_b32 v{t[2]}, s{st1}, v{t[2]}
          v_lshlrev_b32 v{t[0]}, 2, v{t[0]}
          v_xor_b32 v{t[2]}, v{t[2]}, v{t[0]}
          v_lshl_add_u32 v{bB[0]}, v{t[2]}, 4, v{t[1]}
          v_xor_b32 v{bB[1]}, 64, v{bB[0]}""")
    sfb = k.s()
    k(f"""s_mov_b32 s{sfb}, s{st0}
          s_lshl_b32 s{stile}, s{smt}, 2
          s_add_u32 s{stile}, s{stile}, s{sw}""")
    for a, b in zip(al, bl):
        k(f"v_mov_b32 v{a}, v{b}")
    for base, n in [(acc[0][0],16),(acc[0][1],16),(acc[1][0],16),(acc[1][1],16),(g1,4),(g2,4),(gc,4)]:
        for r in range(n): k(f"v_mov_b32 v{base+r}, 0")
    k("s_waitcnt lgkmcnt(0)")
    dws = k.srd(sws, WS_SIZE)
    LV = k.lab("vpath")
    k(f"""s_cmp_ge_u32 s{snt}, 10
          s_cbranch_scc1 {LV}""")

    def reads(st, ks):
        for mb in range(2):
            k(f"ds_read_b128 {vr(fx[st][mb],4)}, v{aA[mb][ks&1]} offset:{(ks>>1)*512}")
        for nb in range(2):
            for q in range(2):
                k(f"ds_read_b64_tr_b16 {vr(fw[st][nb]+2*q,2)}, v{aB[nb]} offset:{ks*4096+q*1024}")

    def mainloop(isV):
        def mm(st):
            x0, w0 = fx[st][0], fw[st][0]
            sm = []
            for h in range(2):
                sm.append(f"v_mfma_f32_4x4x4_16b_bf16 {vr(g1,4)}, {vr(ones,2)}, {vr(x0+2*h,2)}, {vr(g1,4)}")
                sm.append(f"v_mfma_f32_4x4x4_16b_bf16 {vr(g2,4)}, {vr(x0+2*h,2)}, {vr(x0+2*h,2)}, {vr(g2,4)}")
                sm.append(f"v_mfma_f32_4x4x4_16b_bf16 {vr(gc,4)}, {vr(ones,2)}, {vr(w0+2*h,2)}, {vr(gc,4)}")
            n = 0
            for mb in range(2):
                for nb in range(2):
                    a, b = (fx[st][mb], fw[st][nb]) if isV else (fw[st][nb], fx[st][mb])
                    k(f"v_mfma_f32_32x32x16_bf16 {vr(acc[mb][nb],16)}, {vr(a,4)}, {vr(b,4)}, {vr(acc[mb][nb],16)}")
                    for d in sm[[0,2,3,5][n]:[2,3,5,6][n]]: k(d)
                    n += 1
        Lloop = k.lab("loop"); Llast = k.lab("last")
        k(f"""s_mov_b32 s{sslot}, 0
              s_mov_b32 s{scnt}, 10
              s_barrier""")
        reads(0, 0)
        k(f"{Lloop}:")
        for ks in range(3):
            reads((ks+1)&1, ks+1)
            if ks == 2:
                k(f"""s_add_u32 s{sslot}, s{sslot}, 32768
                      s_cmp_eq_u32 s{sslot}, {NSLOT*32768}
                      s_cselect_b32 s{sslot}, 0, s{sslot}
                      s_sub_u32 s{scnt}, s{scnt}, 1""")
            k("s_waitcnt lgkmcnt(6)")
            mm(ks&1)
        for a, b in zip(al, bl):
            k(f"v_add_u32 v{a}, s{sslot}, v{b}")
        k(f"""s_waitcnt lgkmcnt(0)
              s_cmp_eq_u32 s{scnt}, 0
              s_cbranch_scc1 {Llast}
              s_barrier""")
        reads(0, 0)
        mm(1)
        k(f"s_branch {Lloop}")
        k(f"{Llast}:")
        mm(1)

    def stats_exchange(scale_q):
        s1, s2, nm, rs = t[0], t[1], t[4], t[5]
        assert nm % 2 == 0 and rs == nm+1
        k(f"""v_and_b32 v{t[2]}, 1, v{vl}
              v_cmp_eq_u32 vcc, 1, v{t[2]}
              v_and_b32 v{t[2]}, 2, v{vl}
              s_nop 3
              v_cndmask_b32 v{s2}, v{g2}, v{g2+1}, vcc
              v_cndmask_b32 v{t[3]}, v{g2+2}, v{g2+3}, vcc
              v_cmp_eq_u32 vcc, 2, v{t[2]}
              v_mov_b32 v{s1}, v{g1}
              v_mov_b32 v{t[6]}, v{gc}
              v_cndmask_b32 v{s2}, v{s2}, v{t[3]}, vcc
              v_permlane32_swap_b32 v{s1}, v{g1}
              v_mov_b32 v{t[3]}, v{s2}
              v_permlane32_swap_b32 v{t[6]}, v{gc}
              v_add_f32 v{s1}, v{s1}, v{g1}
              v_permlane32_swap_b32 v{s2}, v{t[3]}
              v_add_f32 v{t[6]}, v{t[6]}, v{gc}
              s_nop 0
              v_add_f32 v{s2}, v{s2}, v{t[3]}""")
        ln_scalars(k, s1, s2, t[2], t[3], nm, rs)
        if scale_q:
            k(f"v_mul_f32 v{rs}, s{sscale}, v{rs}")
        k(f"""s_lshl_b32 s{st0}, s{sw}, 7
              v_lshl_add_u32 v{t[2]}, v{vl31}, 2, s{st0}
              s_lshl_b32 s{st0}, s{sfb}, 7
              v_lshl_add_u32 v{t[3]}, v{vl31}, 2, s{st0}
              v_add_u32 v{t[2]}, {ST}, v{t[2]}
              v_add_u32 v{t[3]}, {ST}, v{t[3]}
              ds_write2_b32 v{t[2]}, v{nm}, v{rs} offset1:128
              ds_write_b32 v{t[3]}, v{t[6]} offset:1024
              s_waitcnt lgkmcnt(0)
              s_barrier""")

    k(f"""s_mov_b32 s{sscale}, 1.0
          s_cmp_lt_u32 s{snt}, 5
          s_cselect_b32 s{sscale}, {f32(QSCALE)}, s{sscale}
          s_mov_b32 s{st1}, 52429
          v_lshlrev_b32 v{t[6]}, 4, v{vl31}
          v_lshlrev_b32 v{t[7]}, 3, v{vl31}
          v_add_u32 v{t[7]}, {QKB}, v{t[7]}""")
    sA = [k.s(), k.s()]; sB = [k.s(), k.s()]
    k(f"""s_lshl_b32 s{sA[0]}, s{stile}, 10
          s_xor_b32 s{sA[1]}, s{sA[0]}, 1024
          s_lshl_b32 s{sB[0]}, s{stile}, 8
          s_xor_b32 s{sB[1]}, s{sB[0]}, 256""")
    for nb in range(2):
        k(f"""s_xor_b32 s{st0}, s{sfb}, {nb}
              s_lshl_b32 s{st0}, s{st0}, 3
              s_lshl_b32 s3, s{snt}, 5
              s_add_u32 s{st0}, s{st0}, s3
              v_add_u32 v{t[0]}, s{st0}, v{vhi}""")
        for g4 in range(4):
            o = oaddr + nb*4 + g4
            k(f"""v_add_u32 v{t[1]}, {2*g4}, v{t[0]}
                  v_mul_u32_u24 v{t[2]}, s{st1}, v{t[1]}
                  v_lshrrev_b32 v{t[2]}, 18, v{t[2]}
                  v_mad_i32_i24 v{t[1]}, v{t[2]}, -5, v{t[1]}
                  v_cmp_eq_u32 vcc, 4, v{t[1]}
                  v_lshl_add_u32 v{t[3]}, v{t[2]}, 16, v{t[6]}
                  v_lshl_add_u32 v{t[4]}, v{t[2]}, 14, v{t[7]}
                  v_lshrrev_b32 v{t[2]}, 1, v{t[1]}
                  v_and_b32 v{t[1]}, 1, v{t[1]}
                  v_lshl_add_u32 v{t[3]}, v{t[2]}, 9, v{t[3]}
                  v_lshl_add_u32 v{t[3]}, v{t[1]}, 3, v{t[3]}
                  v_add_u32 v{t[1]}, s{sA[0]}, v{t[3]}
                  v_add_u32 v{t[2]}, s{sB[0]}, v{t[4]}
                  v_cndmask_b32 v{o}, v{t[1]}, v{t[2]}, vcc
                  v_add_u32 v{t[1]}, s{sA[1]}, v{t[3]}
                  v_add_u32 v{t[2]}, s{sB[1]}, v{t[4]}
                  v_cndmask_b32 v{o+8}, v{t[1]}, v{t[2]}, vcc""")
    mainloop(False)
    stats_exchange(True)
    csr = fx[0][0]
    assert fw[1][1] + 4 - csr == 32
    st_pair = [g1, g1+2]
    k(f"""v_xor_b32 v{t[0]}, 128, v{t[2]}
          ds_read2_b32 v[{st_pair[1]}:{st_pair[1]+1}], v{t[0]} offset1:128
          s_lshl_b32 s{st0}, s{sfb}, 7
          v_lshl_add_u32 v{t[1]}, v{vhi}, 4, s{st0}
          v_add_u32 v{t[1]}, {ST+1024}, v{t[1]}
          v_xor_b32 v{t[3]}, 128, v{t[1]}
          v_mov_b32 v{st_pair[0]}, v{t[4]}
          v_mov_b32 v{st_pair[0]+1}, v{t[5]}""")
    for nb in range(2):
        for g4 in range(4):
            k(f"ds_read_b128 {vr(csr+nb*16+g4*4,4)}, v{t[1] if nb==0 else t[3]} offset:{g4*32}")
    for nb in range(2):
        k(f"s_waitcnt lgkmcnt({4 if nb==0 else 0})")
        for mb in range(2):
            a = acc[mb][nb]; sp_ = st_pair[mb]
            for r in range(0, 16, 2):
                k(pk("v_pk_fma_f32", a+r, (csr+nb*16+r,'p'), (sp_,'l'), (a+r,'p')))
            for r in range(0, 16, 2):
                k(pk("v_pk_mul_f32", a+r, (a+r,'p'), (sp_,'h')))
            for g4 in range(4):
                k(f"""v_cvt_pk_bf16_f32 v{a+4*g4}, v{a+4*g4}, v{a+4*g4+1}
                      v_cvt_pk_bf16_f32 v{a+4*g4+1}, v{a+4*g4+2}, v{a+4*g4+3}
                      buffer_store_dwordx2 v[{a+4*g4}:{a+4*g4+1}], v{oaddr+mb*8+nb*4+g4}, s[{dws}:{dws+3}], 0 offen""")
    k("s_endpgm")
    k(f"""{LV}:
          s_mov_b32 s{st1}, 52429
          s_mul_i32 s{sA[0]}, s{stile}, 1280
          s_xor_b32 s{st0}, s{stile}, 1
          s_mul_i32 s{sA[1]}, s{st0}, 1280
          s_mov_b32 s{sB[0]}, 81920
          v_mul_u32_u24 v{t[5]}, 320, v{vhi}
          v_add_u32 v{t[5]}, {VF}, v{t[5]}""")
    for nb in range(2):
        k(f"""s_xor_b32 s{st0}, s{sfb}, {nb}
              s_lshl_b32 s{st0}, s{st0}, 5
              s_lshl_b32 s3, s{snt}, 7
              s_add_u32 s{st0}, s{st0}, s3
              s_sub_u32 s{st0}, s{st0}, 1280
              v_add_u32 v{t[1]}, s{st0}, v{vl31}
              v_mul_u32_u24 v{t[2]}, s{st1}, v{t[1]}
              v_lshrrev_b32 v{t[2]}, 20, v{t[2]}
              v_mul_u32_u24 v{t[3]}, 20, v{t[2]}
              v_sub_u32 v{t[1]}, v{t[1]}, v{t[3]}
              v_mad_u32_u24 v{t[2]}, v{t[2]}, s{sB[0]}, v{t[5]}
              v_lshl_add_u32 v{t[2]}, v{t[1]}, 4, v{t[2]}
              v_add_u32 v{oaddr+nb}, s{sA[0]}, v{t[2]}
              v_add_u32 v{oaddr+2+nb}, s{sA[1]}, v{t[2]}""")
    mainloop(True)
    stats_exchange(False)
    assert t[6] % 2 == 0
    k(f"""v_xor_b32 v{t[0]}, 128, v{t[3]}
          ds_read_b32 v{t[7]}, v{t[0]} offset:1024
          s_lshl_b32 s{st0}, s{sw}, 7
          v_lshl_add_u32 v{t[1]}, v{vhi}, 4, s{st0}
          v_add_u32 v{t[1]}, {ST}, v{t[1]}
          v_xor_b32 v{t[3]}, 128, v{t[1]}""")
    for mb in range(2):
        for h in range(2):
            for g4 in range(4):
                k(f"ds_read_b128 {vr(csr+h*16+g4*4,4)}, v{t[1] if mb==0 else t[3]} offset:{g4*32+h*512}")
        k(f"s_waitcnt lgkmcnt(0)")
        for nb in range(2):
            a = acc[mb][nb]
            for r in range(0, 16, 2):
                k(pk("v_pk_fma_f32", a+r, (csr+r,'p'), (t[6],'lh'[nb]), (a+r,'p')))
            for r in range(0, 16, 2):
                k(pk("v_pk_mul_f32", a+r, (a+r,'p'), (csr+16+r,'p')))
            for m_ in range(2):
                for i in range(4):
                    k(f"v_cvt_pk_bf16_f32 v{a+8*m_+i}, v{a+8*m_+2*i}, v{a+8*m_+2*i+1}")
                k(f"buffer_store_dwordx4 {vr(a+8*m_,4)}, v{oaddr+2*mb+nb}, s[{dws}:{dws+3}], 0 offen offset:{m_*640}")
    k(f"""{Lend}:
          s_endpgm""")
    return k
```

```python
from common import *
XCH = 0
FLG = 24576
LGU = 25600
LDW = LGU + 20480
def gen_k2():
    k = Kern("k2_attn_kernel", 256, 640, LDW + 40960)
    sws = k.s(2); sw, st0, st1 = k.s(), k.s(), k.s()
    Lend = k.lab("end")
    vl = k.v()
    k(f"""s_load_dwordx2 s[{sws}:{sws+1}], s[0:1], 72
          s_cmp_ge_u32 s2, 256
          s_cbranch_scc1 {Lend}""")
    wave_id(k, sw, vl)
    k(f"""s_nop 3
          s_cmp_lt_u32 s{sw}, 8
          s_cbranch_scc1 L_k2_attn
          s_cmp_eq_u32 s{sw}, 9
          s_cbranch_scc1 L_k2_dw""")
    m = k.vmark(); ms = k.ns
    sp = k.s(4); sq, spart, so = k.s(), k.s(), k.s()
    sF = [k.s() for _ in range(4)]
    t = [k.v() for _ in range(4)]
    vg, a1, a2, vst = k.v(), k.v(), k.v(), k.v()
    ones = k.v(2); cs = [k.v(4, 4) for _ in range(4)]
    fr = [k.v(4, 4) for _ in range(20)]
    k(f"""s_cmp_ge_u32 s2, 192
          s_cbranch_scc1 {Lend}
          s_load_dwordx4 s[{sp}:{sp+3}], s[0:1], 32
          s_lshr_b32 s{sq}, s2, 3
          s_and_b32 s{spart}, s2, 7
          v_lshrrev_b32 v{t[0]}, 3, v{vl}
          v_mul_u32_u24 v{t[0]}, 3072, v{t[0]}
          v_and_b32 v{t[1]}, 7, v{vl}
          v_lshl_add_u32 v{vg}, v{t[1]}, 4, v{t[0]}
          s_mul_i32 s{so}, s{spart}, {80*3072}
          s_lshl_b32 s{st0}, s{sq}, 7
          s_add_u32 s{so}, s{so}, s{st0}
          s_waitcnt lgkmcnt(0)""")
    dg = k.srd(sp, 640*3072); du = k.srd(sp+2, 640*3072); dws = k.srd(sws, WS_SIZE)
    for p in range(10):
        k(f"""s_mov_b32 m0, {LGU + p*1024}
              s_nop 0
              buffer_load_dwordx4 v{vg}, s[{dg}:{dg+3}], s{so} offen lds
              s_mov_b32 m0, {LGU + 10240 + p*1024}
              s_nop 0
              buffer_load_dwordx4 v{vg}, s[{du}:{du+3}], s{so} offen lds
              s_add_u32 s{so}, s{so}, {8*3072}""")
    k(f"""v_bfe_u32 v{t[0]}, v{vl}, 1, 1
          v_mul_u32_u24 v{t[0]}, 10240, v{t[0]}
          v_bfe_u32 v{t[1]}, v{vl}, 4, 1
          v_lshl_add_u32 v{t[0]}, v{t[1]}, 4, v{t[0]}
          v_and_b32 v{t[1]}, 1, v{vl}
          v_lshl_add_u32 v{t[0]}, v{t[1]}, 3, v{t[0]}
          v_bfe_u32 v{t[1]}, v{vl}, 2, 2
          v_lshl_add_u32 v{t[0]}, v{t[1]}, 7, v{t[0]}
          v_add_u32 v{t[0]}, {LGU}, v{t[0]}
          v_lshrrev_b32 v{t[1]}, 5, v{vl}
          v_lshl_add_u32 v{a2}, v{t[1]}, 10, v{t[0]}
          v_lshlrev_b32 v{vst}, 4, v{vl}
          v_mov_b32 v{ones}, {hex(ONES)}
          v_mov_b32 v{ones+1}, {hex(ONES)}""")
    for f in range(4):
        k(f"""s_lshl_b32 s{st0}, s{sq}, 2
              s_add_u32 s{st0}, s{st0}, {f}
              s_mul_i32 s{st1}, s{st0}, 43
              s_lshr_b32 s{st1}, s{st1}, 8
              s_mul_i32 s{st1}, s{st1}, {245760 - 6*1024}
              s_lshl_b32 s{st0}, s{st0}, 10
              s_add_u32 s{st0}, s{st0}, s{st1}
              s_mul_i32 s{st1}, s{spart}, {5*6144}
              s_add_u32 s{st0}, s{st0}, s{st1}
              s_add_u32 s{sF[f]}, s{st0}, {WGUF}""")
    k("s_waitcnt vmcnt(0)")
    for s5 in range(5):
        for f in range(4):
            for q in range(2):
                a, row = a2, 16*s5 + 4*q
                k(f"ds_read_b64_tr_b16 {vr(fr[s5*4+f]+2*q,2)}, v{a} offset:{row*128+f*32}")
        if s5 >= 1:
            pass
    for s5 in range(5):
        k(f"s_waitcnt lgkmcnt({min(15, 8*(4-s5))})")
        for f in range(4):
            k(f"buffer_store_dwordx4 {vr(fr[s5*4+f],4)}, v{vst}, s[{dws}:{dws+3}], s{sF[f]} offen")
            if s5 < 4: k(f"s_add_u32 s{sF[f]}, s{sF[f]}, 6144")
        for h in range(2):
            for f in range(4):
                c = "0" if (s5 == 0 and h == 0) else vr(cs[f],4)
                k(f"v_mfma_f32_4x4x4_16b_bf16 {vr(cs[f],4)}, {vr(ones,2)}, {vr(fr[s5*4+f]+2*h,2)}, {c}")
    k(f"""s_mul_i32 s{st0}, s{spart}, {96*128}
          s_lshl_b32 s{st1}, s{sq}, 9
          s_add_u32 s{st0}, s{st0}, s{st1}
          s_add_u32 s{st0}, s{st0}, {CSG}
          v_lshlrev_b32 v{vst}, 2, v{vl}
          s_nop 1""")
    for f in range(4):
        k(f"v_permlane32_swap_b32 v{cs[f]}, v{cs[f]+1}")
    k("s_mov_b32 exec_hi, 0")
    for f in range(4):
        k(f"""v_add_f32 v{cs[f]}, v{cs[f]}, v{cs[f]+1}
              buffer_store_dword v{cs[f]}, v{vst}, s[{dws}:{dws+3}], s{st0} offen offset:{f*128}""")
    k("s_endpgm")
    k.vrelease(m); k.ns = ms
    k("L_k2_dw:")
    sp = k.s(2); sp2 = k.s(2); su, sbase, sA, sB, sC, so, sct, snb = [k.s() for _ in range(8)]
    t = [k.v() for _ in range(4)]
    v16, v16b, ard, ard2 = k.v(), k.v(), k.v(), k.v()
    fr = [k.v(4, 4) for _ in range(20)]
    k(f"""s_cmp_lt_u32 s2, 188
          s_cbranch_scc1 {Lend}
          s_load_dwordx2 s[{sp}:{sp+1}], s[0:1], 48
          s_load_dwordx2 s[{sp2}:{sp2+1}], s[0:1], 16
          s_sub_u32 s{su}, s2, 188
          v_lshlrev_b32 v{v16}, 4, v{vl}
          v_add_u32 v{v16b}, 4096, v{v16}
          s_waitcnt lgkmcnt(0)
          s_cmp_ge_u32 s{su}, 48
          s_cbranch_scc1 L_k2_wo
          s_mul_i32 s{sbase}, s{su}, {32*1280}
          s_mov_b32 s{sA}, {16*1280}
          s_mov_b32 s{sB}, {8*1280}
          s_mov_b32 s{sC}, {4*1280}
          s_mul_i32 s{so}, s{su}, 5120
          s_add_u32 s{so}, s{so}, {WDF}
          s_mov_b32 s{sct}, {48*5120}
          s_mov_b32 s{snb}, {1536*1280}
          s_branch L_k2_dwgo
          L_k2_wo:
          s_mov_b64 s[{sp}:{sp+1}], s[{sp2}:{sp2+1}]
          s_sub_u32 s{su}, s{su}, 48
          s_mul_i32 s{so}, s{su}, 5120
          s_add_u32 s{so}, s{so}, {WOF}
          s_mov_b32 s{sct}, {20*5120}
          s_mov_b32 s{snb}, {640*1280}
          s_mul_i32 s{sbase}, s{su}, {40*1280}
          s_mov_b32 s{sA}, {20*1280}
          s_mov_b32 s{sB}, {8*1280}
          s_mov_b32 s{sC}, {4*1280}
          s_cmp_lt_u32 s{su}, 16
          s_cbranch_scc1 L_k2_dwgo
          s_mul_i32 s{sbase}, s{su}, {160*1280}
          s_sub_u32 s{sbase}, s{sbase}, {(160*16-16)*1280}
          s_mov_b32 s{sA}, {80*1280}
          s_mov_b32 s{sB}, {20*1280}
          s_mov_b32 s{sC}, {40*1280}
          L_k2_dwgo:""")
    dsrc = k.srd(sp, 0); dws = k.srd(sws, WS_SIZE)
    k(f"s_mov_b32 s{dsrc+2}, s{snb}")
    for g in range(8):
        k(f"s_mov_b32 s{st0}, s{sbase}")
        if g & 4: k(f"s_add_u32 s{st0}, s{st0}, s{sA}")
        if g & 2: k(f"s_add_u32 s{st0}, s{st0}, s{sB}")
        if g & 1: k(f"s_add_u32 s{st0}, s{st0}, s{sC}")
        k(f"""s_mov_b32 m0, {LDW + g*5120}
              s_nop 0""")
        for p in range(4):
            k(f"buffer_load_dwordx4 v{v16}, s[{dsrc}:{dsrc+3}], s{st0} offen offset:{p*1024} lds")
        k(f"""s_mov_b32 m0, {LDW + g*5120 + 4096}
              s_nop 0
              buffer_load_dwordx4 v{v16b}, s[{dsrc}:{dsrc+3}], s{st0} offen lds""")
    k(f"""v_lshrrev_b32 v{t[0]}, 5, v{vl}
          v_lshlrev_b32 v{t[0]}, 4, v{t[0]}
          v_bfe_u32 v{t[1]}, v{vl}, 2, 3
          v_add_u32 v{t[0]}, v{t[0]}, v{t[1]}
          v_mul_u32_u24 v{t[0]}, 1280, v{t[0]}
          v_and_b32 v{t[1]}, 3, v{vl}
          v_add_u32 v{t[0]}, {LDW}, v{t[0]}
          v_lshl_add_u32 v{ard}, v{t[1]}, 4, v{t[0]}
          v_lshl_add_u32 v{ard2}, v{t[1]}, 3, v{t[0]}
          s_waitcnt vmcnt(0)""")
    for half in range(2):
        for i in range(20):
            for q in range(2):
                ct, j5 = half*4 + i//5, i % 5
                a, co = (ard, (j5>>1)*64 + (j5&1)*8) if j5 < 4 else (ard2, 128)
                k(f"ds_read_b64_tr_b16 {vr(fr[i]+2*q,2)}, v{a} offset:{q*10240+ct*160+co}")
        k("s_waitcnt lgkmcnt(0)")
        for i in range(20):
            j5 = i % 5
            if j5 < 4: k(f"buffer_store_dwordx4 {vr(fr[i],4)}, v{v16}, s[{dws}:{dws+3}], s{so} offen offset:{j5*1024}")
            else:
                k(f"""buffer_store_dwordx4 {vr(fr[i],4)}, v{v16b}, s[{dws}:{dws+3}], s{so} offen
                      s_add_u32 s{so}, s{so}, s{sct}""")
        if half == 0: k("s_waitcnt vmcnt(0)")
    k("s_endpgm")
    k.vrelease(m); k.ns = ms
    k("L_k2_attn:")
    shead, sqt, skh, sKA, sKB, sV, scnt, ssec, sKA0, sKB0, sV0 = [k.s() for _ in range(11)]
    smask = k.s(2)
    S = [k.v(16, 4) for _ in range(2)]; O = [k.v(16, 4) for _ in range(2)]; NM = [k.v(16, 4) for _ in range(2)]
    P = [k.v(8, 4) for _ in range(2)]
    QA = [k.v(4, 4) for _ in range(2)]; KA = [k.v(4, 4) for _ in range(2)]
    V = [[k.v(4, 4) for _ in range(2)] for _ in range(2)]
    QB = [k.v(2) for _ in range(2)]; KB = [k.v(2) for _ in range(2)]
    vKA, vKB, vV = k.v(), k.v(), k.v()
    mx = [k.v(), k.v()]
    t = [k.v() for _ in range(4)]
    k(f"""s_and_b32 s{shead}, s2, 7
          s_lshl_b32 s{shead}, s{shead}, 2
          s_bfe_u32 s{st0}, s2, 0x20003
          s_add_u32 s{shead}, s{shead}, s{st0}
          s_lshr_b32 s{skh}, s{sw}, 2
          s_lshr_b32 s{sqt}, s2, 5
          s_lshl_b32 s{sqt}, s{sqt}, 2
          s_and_b32 s{st0}, s{sw}, 3
          s_add_u32 s{sqt}, s{sqt}, s{st0}
          s_lshl_b32 s{sqt}, s{sqt}, 1
          s_add_u32 s{sqt}, s{sqt}, s{skh}
          v_lshlrev_b32 v{vKA}, 4, v{vl}
          v_and_b32 v{t[0]}, 31, v{vl}
          v_lshlrev_b32 v{vKB}, 3, v{t[0]}
          v_lshrrev_b32 v{t[1]}, 5, v{vl}
          v_mul_u32_u24 v{t[1]}, 320, v{t[1]}
          v_lshl_add_u32 v{vV}, v{t[0]}, 4, v{t[1]}
          s_mov_b32 s{smask}, 0x000fffff
          s_mov_b32 s{smask+1}, 0x000fffff
          s_mov_b32 s{ssec}, 0""")
    for i in range(2):
        for r in range(2): k(f"v_mov_b32 v{QB[i]+r}, 0")
    for i in range(2):
        for j in range(2):
            for r in range(4): k(f"v_mov_b32 v{V[i][j]+r}, {hex(ONES)}")
    k("s_waitcnt lgkmcnt(0)")
    dws = k.srd(sws, WS_SIZE)
    D = f"s[{dws}:{dws+3}]"
    KM = P[0]
    k(f"""s_lshl_b32 s{sKA0}, s{shead}, 16
          s_lshl_b32 s{st0}, s{sqt}, 10
          s_add_u32 s{st0}, s{st0}, s{sKA0}
          s_xor_b32 s{st1}, s{st0}, 1024
          buffer_load_dwordx4 {vr(QA[0],4)}, v{vKA}, {D}, s{st0} offen
          buffer_load_dwordx4 {vr(QA[1],4)}, v{vKA}, {D}, s{st1} offen
          s_add_u32 s{sKA0}, s{sKA0}, {32*65536}
          buffer_load_dwordx4 {vr(KM,4)}, v{vKA}, {D}, s{sKA0} offen
          s_lshl_b32 s{sKB0}, s{shead}, 14
          s_add_u32 s{sKB0}, s{sKB0}, {QKB}
          s_lshl_b32 s{st0}, s{sqt}, 8
          s_add_u32 s{st0}, s{st0}, s{sKB0}
          s_xor_b32 s{st1}, s{st0}, 256
          s_mov_b32 exec_hi, 0
          buffer_load_dwordx2 {vr(QB[0],2)}, v{vKB}, {D}, s{st0} offen
          buffer_load_dwordx2 {vr(QB[1],2)}, v{vKB}, {D}, s{st1} offen
          s_mov_b64 exec, -1
          s_add_u32 s{sKB0}, s{sKB0}, {32*16384}
          buffer_load_dwordx2 {vr(KM+4,2)}, v{vKB}, {D}, s{sKB0} offen
          s_mul_i32 s{sV0}, s{shead}, 81920
          s_add_u32 s{sV0}, s{sV0}, {VF}""")
    def loadK(i, off):
        k(f"""buffer_load_dwordx4 {vr(KA[i],4)}, v{vKA}, {D}, s{sKA} offen offset:{off*1024}
              buffer_load_dwordx2 {vr(KB[i],2)}, v{vKB}, {D}, s{sKB} offen offset:{off*256}""")
    def loadV(i, off):
        k(f"""s_mov_b64 exec, s[{smask}:{smask+1}]
              buffer_load_dwordx4 {vr(V[i][0],4)}, v{vV}, {D}, s{sV} offen offset:{off*1280}
              buffer_load_dwordx4 {vr(V[i][1],4)}, v{vV}, {D}, s{sV} offen offset:{off*1280+640}
              s_mov_b64 exec, -1""")
    def first_loads():
        k(f"""s_lshl_b32 s{st0}, s{skh}, 15
              s_add_u32 s{sKA}, s{sKA0}, s{st0}
              s_lshl_b32 s{st0}, s{skh}, 13
              s_add_u32 s{sKB}, s{sKB0}, s{st0}
              s_mul_i32 s{st0}, s{skh}, {32*1280}
              s_add_u32 s{sV}, s{sV0}, s{st0}""")
        loadK(0, 0); loadK(1, 1); loadV(0, 0)
    def qk16(dst, ka, q, c): return f"v_mfma_f32_32x32x16_bf16 {vr(dst,16)}, {vr(ka,4)}, {vr(QA[q],4)}, {c}"
    def qk8(dst, kb, q): return f"v_mfma_f32_32x32x8bf16_1k {vr(dst,16)}, {vr(kb,2)}, {vr(QB[q],2)}, {vr(dst,16)}"
    def pv(q, v, p, h): return f"v_mfma_f32_32x32x16_bf16 {vr(O[q],16)}, {vr(V[v][h],4)}, {vr(P[p]+4*h,4)}, {vr(O[q],16)}"
    def maxtree(q, first):
        s = S[q]
        if first:
            k(f"v_max3_f32 v{mx[q]}, v{s}, v{s+1}, v{s+2}")
            for r in range(3, 15, 2): k(f"v_max3_f32 v{mx[q]}, v{mx[q]}, v{s+r}, v{s+r+1}")
            k(f"v_max_f32 v{mx[q]}, v{mx[q]}, v{s+15}")
        else:
            for r in range(0, 16, 2): k(f"v_max3_f32 v{mx[q]}, v{mx[q]}, v{s+r}, v{s+r+1}")
    first_loads()
    k("s_waitcnt vmcnt(6)")
    k(qk16(S[0], KM, 0, "0")); k(qk16(S[1], KM, 1, "0")); k(qk8(S[0], KM+4, 0)); k(qk8(S[1], KM+4, 1))
    for q in range(2):
        for r in range(16): k(f"v_mov_b32 v{O[q]+r}, 0")
    maxtree(0, True); maxtree(1, True)
    k("L_k2_setm:")
    k(f"""v_mov_b32 v{t[0]}, v{mx[0]}
          v_mov_b32 v{t[1]}, v{mx[1]}
          s_nop 0
          v_permlane32_swap_b32 v{mx[0]}, v{t[0]}
          v_permlane32_swap_b32 v{mx[1]}, v{t[1]}
          s_nop 0
          v_max_f32 v{mx[0]}, v{mx[0]}, v{t[0]}
          v_max_f32 v{mx[1]}, v{mx[1]}, v{t[1]}""")
    for q in range(2):
        for r in range(16): k(f"v_sub_f32 v{NM[q]+r}, 0, v{mx[q]}")
    for r in range(8): k(f"v_mov_b32 v{P[1]+r}, 0")
    k(f"""s_mov_b32 s{scnt}, 16
          s_waitcnt vmcnt(4)""")
    k(qk16(S[0], KA[0], 0, vr(NM[0],16))); k(qk8(S[0], KB[0], 0))
    k("s_nop 7\ns_nop 3")
    k(".p2align 6\nL_k2_loop:")
    def phase(sb, mf, after):
        s = S[sb]; p = P[sb]
        for g in range(4):
            k(mf[g])
            if g in after: after[g]()
            for i in range(4): k(f"v_exp_f32 v{s+4*g+i}, v{s+4*g+i}")
            for i in range(2): k(f"v_cvt_pk_bf16_f32 v{p+2*g+i}, v{s+4*g+2*i}, v{s+4*g+2*i+1}")
    phase(0, [qk16(S[1], KA[0], 1, vr(NM[1],16)), qk8(S[1], KB[0], 1), pv(1, 1, 1, 0), pv(1, 1, 1, 1)],
          {1: lambda: loadK(0, 2), 3: lambda: loadV(1, 1)})
    k("s_waitcnt vmcnt(4)")
    phase(1, [qk16(S[0], KA[1], 0, vr(NM[0],16)), qk8(S[0], KB[1], 0), pv(0, 0, 0, 0), pv(0, 0, 0, 1)], {})
    phase(0, [qk16(S[1], KA[1], 1, vr(NM[1],16)), qk8(S[1], KB[1], 1), pv(1, 0, 1, 0), pv(1, 0, 1, 1)],
          {1: lambda: loadK(1, 3), 3: lambda: loadV(0, 2)})
    k("s_waitcnt vmcnt(4)")
    def adv():
        k(f"""s_add_u32 s{sKA}, s{sKA}, 2048
              s_add_u32 s{sKB}, s{sKB}, 512
              s_add_u32 s{sV}, s{sV}, 2560
              s_sub_u32 s{scnt}, s{scnt}, 1
              s_cmp_lg_u32 s{scnt}, 0""")
    phase(1, [qk16(S[0], KA[0], 0, vr(NM[0],16)), qk8(S[0], KB[0], 0), pv(0, 1, 0, 0), pv(0, 1, 0, 1)], {1: adv})
    k("s_cbranch_scc1 L_k2_loop")
    k("s_nop 0")
    k(pv(1, 1, 1, 0)); k(pv(1, 1, 1, 1))
    k(f"""s_mul_i32 s{st0}, s{sw}, 3072
          v_add_u32 v{t[2]}, s{st0}, v{vKA}
          s_xor_b32 s{st1}, s{sw}, 4
          s_mul_i32 s{st1}, s{st1}, 3072
          v_add_u32 v{t[3]}, s{st1}, v{vKA}
          v_add_f32 v{t[0]}, |v{O[0]}|, |v{O[0]+1}|""")
    for r in range(2, 12): k(f"v_add_f32 v{t[0]}, v{t[0]}, |v{O[0]+r}|")
    for i in range(3): k(f"ds_write_b128 v{t[2]}, {vr(O[1]+4*i,4)} offset:{XCH+i*1024}")
    for r in range(12): k(f"v_add_f32 v{t[0]}, v{t[0]}, |v{O[1]+r}|")
    k(f"""s_mov_b32 s{st0}, {f32(2.0**59)}
          v_cmp_ngt_f32 vcc, s{st0}, v{t[0]}
          s_lshl_b32 s{st1}, s{sw}, 2
          v_mov_b32 v{t[1]}, s{st1}
          s_or_b32 s{st0}, vcc_lo, vcc_hi
          v_mov_b32 v{t[0]}, s{st0}
          ds_write_b32 v{t[1]}, v{t[0]} offset:{FLG}
          v_and_b32 v{t[1]}, 28, v{vl}
          s_waitcnt lgkmcnt(0)
          s_barrier
          ds_read_b32 v{t[0]}, v{t[1]} offset:{FLG}""")
    R = S[0]
    for i in range(3): k(f"ds_read_b128 {vr(R+4*i,4)}, v{t[3]} offset:{XCH+i*1024}")
    k(f"""s_mul_i32 s{st0}, s{sqt}, 40960
          s_add_u32 s{st0}, s{st0}, {OF}
          s_lshl_b32 s{st1}, s{shead}, 9
          s_add_u32 s{st1}, s{st1}, s{st0}
          v_bfe_u32 v{t[1]}, v{vl}, 4, 1
          v_mul_u32_u24 v{t[1]}, 20480, v{t[1]}
          v_and_b32 v{t[2]}, 15, v{vl}
          v_lshl_add_u32 v{t[1]}, v{t[2]}, 4, v{t[1]}
          v_lshrrev_b32 v{t[2]}, 5, v{vl}
          v_lshl_add_u32 v{t[2]}, v{t[2]}, 8, v{t[1]}
          s_lshr_b32 s3, s{shead}, 1
          s_lshl_b32 s3, s3, 8
          s_add_u32 s{st0}, s{st0}, s3
          s_and_b32 s3, s{shead}, 1
          s_lshl_b32 s3, s3, 3
          s_add_u32 s{st0}, s{st0}, s3
          s_add_u32 s{st0}, s{st0}, {64*256}
          s_waitcnt lgkmcnt(3)
          v_cmp_ne_u32 vcc, 0, v{t[0]}
          s_cmp_lg_u32 s{ssec}, 0
          s_cbranch_scc1 L_k2_fin
          s_cbranch_vccnz L_k2_fb
          L_k2_fin:
          s_waitcnt vmcnt(0) lgkmcnt(0)
          v_add_f32 v{O[0]+8}, v{O[0]+8}, v{R+8}""")
    for r in (0, 2, 4, 6, 10): k(pk("v_pk_add_f32", O[0]+r, (O[0]+r,'p'), (R+r,'p')))
    k(f"""v_rcp_f32 v{t[0]}, v{O[0]+8}
          v_add_f32 v{O[0]+9}, v{O[0]+9}, v{R+9}
          s_nop 0
          v_mov_b32 v{R}, v{t[0]}
          v_mov_b32 v{R+1}, v{t[0]}
          s_nop 1
          v_permlane32_swap_b32 v{R}, v{R+1}
          s_nop 1""")
    for r in range(0, 12, 2): k(pk("v_pk_mul_f32", O[0]+r, (O[0]+r,'p'), (R,'h')))
    for i in range(6): k(f"v_cvt_pk_bf16_f32 v{O[0]+i}, v{O[0]+2*i}, v{O[0]+2*i+1}")
    k(f"""buffer_store_dwordx4 {vr(O[0],4)}, v{t[2]}, {D}, s{st1} offen
          s_mov_b32 exec_hi, 0
          buffer_store_dwordx2 {vr(O[0]+4,2)}, v{t[1]}, {D}, s{st0} offen
          {Lend}:
          s_endpgm""")
    k(f"""L_k2_fb:
          s_waitcnt vmcnt(0) lgkmcnt(0)
          s_barrier
          s_mov_b32 s{ssec}, 1
          s_mov_b32 s{sKA}, s{sKA0}
          s_mov_b32 s{sKB}, s{sKB0}
          s_mov_b32 s{scnt}, 64
          L_k2_fbl:""")
    loadK(0, 0)
    k("s_waitcnt vmcnt(0)")
    k(qk16(S[0], KA[0], 0, "0")); k(qk16(S[1], KA[0], 1, "0")); k(qk8(S[0], KB[0], 0)); k(qk8(S[1], KB[0], 1))
    k(f"""s_add_u32 s{sKA}, s{sKA}, 1024
          s_add_u32 s{sKB}, s{sKB}, 256
          s_sub_u32 s{scnt}, s{scnt}, 1
          s_cmp_lg_u32 s{scnt}, 0
          s_nop 7
          s_nop 3""")
    maxtree(0, False); maxtree(1, False)
    k("s_cbranch_scc1 L_k2_fbl")
    first_loads()
    for q in range(2):
        for r in range(16): k(f"v_mov_b32 v{O[q]+r}, 0")
    k("s_branch L_k2_setm")
    return k
```

```python
from common import *
def gen_k35(down):
    NS = 48 if down else 20
    NST = NS // 4
    NSLOT = min(NST, 7)
    ABASE, ASTRIDE, WBASE = (HHF, 49152, WDF) if down else (OF, 20480, WOF)
    nm = "k5_down_kernel" if down else "k3_oproj_kernel"
    k = Kern(nm, 256, 512, NSLOT*20480)
    sws = k.s(2); sio = k.s(2); sw, smt, sct, st0, st1 = [k.s() for _ in range(5)]
    Lend = k.lab("end"); Lc = k.lab("comp")
    vl = k.v(); v16 = k.v()
    k(f"""s_load_dwordx2 s[{sws}:{sws+1}], s[0:1], 72
          s_load_dwordx2 s[{sio}:{sio+1}], s[0:1], {56 if down else 0}
          s_cmp_ge_u32 s2, 256
          s_cbranch_scc1 {Lend}
          s_and_b32 s{smt}, s2, 7
          s_lshl_b32 s{smt}, s{smt}, 2
          s_bfe_u32 s{st0}, s2, 0x20003
          s_add_u32 s{smt}, s{smt}, s{st0}
          s_lshr_b32 s{sct}, s2, 5""")
    wave_id(k, sw, vl)
    k(f"""v_lshlrev_b32 v{v16}, 4, v{vl}
          s_waitcnt lgkmcnt(0)""")
    dws = k.srd(sws, WS_SIZE); D = f"s[{dws}:{dws+3}]"
    k(f"""s_cmp_lt_u32 s{sw}, 4
          s_cbranch_scc1 {Lc}""")
    m = k.vmark()
    v16b = k.v(); so, sm0 = k.s(), k.s()
    k(f"""s_sub_u32 s{st0}, s{sw}, 4
          s_mul_i32 s{sm0}, s{st0}, 5120
          s_mul_i32 s{so}, s{sct}, {NS*5120}
          s_add_u32 s{so}, s{so}, s{sm0}
          s_add_u32 s{so}, s{so}, {WBASE}
          v_add_u32 v{v16b}, 4096, v{v16}""")
    def issue(stage):
        slot = stage % NSLOT
        k(f"""s_add_u32 m0, s{sm0}, {slot*20480}
              s_nop 0""")
        for p in range(4):
            k(f"buffer_load_dwordx4 v{v16}, {D}, s{so} offen offset:{p*1024} lds")
        k(f"""s_add_u32 m0, s{sm0}, {slot*20480+4096}
              s_nop 0
              buffer_load_dwordx4 v{v16b}, {D}, s{so} offen lds
              s_add_u32 s{so}, s{so}, 20480""")
    for s in range(NSLOT): issue(s)
    issued = NSLOT-1
    for s in range(NST):
        k(f"""s_waitcnt vmcnt({5*(issued-s)})
              s_barrier""")
        if s >= 1 and s-1+NSLOT < NST:
            issue(s-1+NSLOT); issued = s-1+NSLOT
    k("s_endpgm")
    k.vrelease(m)
    k(f"{Lc}:")
    sa = k.s(); srow = k.s()
    acc = [k.v(4, 4) for _ in range(5)]
    W = [[k.v(4, 4) for _ in range(5)] for _ in range(2)]
    res = k.v(12, 4)
    t = [k.v() for _ in range(6)]
    vrm, vhf = k.v(), k.v()
    AD = min(NS, 40)
    A = [k.a(4, 4) for _ in range(AD)]
    A = [A[i % AD] for i in range(NS)]
    k(f"""s_lshl_b32 s{srow}, s{smt}, 2
          s_add_u32 s{srow}, s{srow}, s{sw}
          s_mul_i32 s{sa}, s{srow}, {ASTRIDE}
          s_add_u32 s{sa}, s{sa}, {ABASE}""")
    def aload(s):
        k(f"buffer_load_dwordx4 {ar(A[s],4)}, v{v16}, {D}, s{sa} offen offset:{(s&3)*1024}")
        if (s & 3) == 3: k(f"s_add_u32 s{sa}, s{sa}, 4096")
    for s in range(8): aload(s)
    dio = k.srd(sio, 2048*1280); IO = f"s[{dio}:{dio+3}]"
    k(f"""v_and_b32 v{t[0]}, 15, v{vl}
          v_lshrrev_b32 v{t[1]}, 4, v{vl}
          s_lshl_b32 s{st0}, s{srow}, 4
          v_add_u32 v{t[2]}, s{st0}, v{t[0]}
          v_mul_u32_u24 v{t[3]}, 1280, v{t[2]}
          s_mul_i32 s{st0}, s{sct}, 160
          v_add_u32 v{t[3]}, s{st0}, v{t[3]}
          v_lshl_add_u32 v{vrm}, v{t[1]}, 4, v{t[3]}
          v_lshl_add_u32 v{t[3]}, v{t[1]}, 3, v{t[3]}
          s_lshr_b32 s{st0}, s{srow}, 1
          s_mul_i32 s{st0}, s{st0}, 40960
          s_and_b32 s{st1}, s{srow}, 1
          s_lshl_b32 s{st1}, s{st1}, 8
          s_add_u32 s{st0}, s{st0}, s{st1}
          s_mul_i32 s{st1}, s{sct}, 5120
          s_add_u32 s{st0}, s{st0}, s{st1}
          s_add_u32 s{st0}, s{st0}, {HF}
          v_lshl_add_u32 v{t[0]}, v{t[0]}, 4, s{st0}
          v_lshl_add_u32 v{vhf}, v{t[1]}, 9, v{t[0]}
          v_lshrrev_b32 v{t[4]}, 1, v{t[1]}
          v_lshl_add_u32 v{t[0]}, v{t[4]}, 9, v{t[0]}
          v_and_b32 v{t[1]}, 1, v{t[1]}
          v_lshl_add_u32 v{t[0]}, v{t[1]}, 3, v{t[0]}
          v_add_u32 v{t[0]}, 4096, v{t[0]}""")
    vrm2, vhf2, vR = t[3], t[0], t[2]
    for s in range(8, AD): aload(s)
    if down:
        k(f"""buffer_load_dwordx4 {vr(res,4)}, v{vhf}, {D}, 0 offen
              buffer_load_dwordx4 {vr(res+4,4)}, v{vhf}, {D}, 0 offen offset:2048
              buffer_load_dwordx2 {vr(res+8,2)}, v{vhf2}, {D}, 0 offen""")
    else:
        k(f"""buffer_load_dwordx4 {vr(res,4)}, v{vrm}, {IO}, 0 offen
              buffer_load_dwordx4 {vr(res+4,4)}, v{vrm}, {IO}, 0 offen offset:64
              buffer_load_dwordx2 {vr(res+8,2)}, v{vrm2}, {IO}, 0 offen offset:128""")
    vb = [k.v() for _ in range((NSLOT*20480 + 61439)//61440)]
    for i, r in enumerate(vb):
        k(f"v_add_u32 v{r}, {i*61440}, v{v16}")
    def wread(s):
        off = ((s//4) % NSLOT)*20480 + (s & 3)*5120
        for j in range(5):
            k(f"ds_read_b128 {vr(W[s&1][j],4)}, v{vb[off//61440]} offset:{off%61440 + j*1024}")
    k("s_barrier")
    wread(0)
    for s in range(NS):
        last_in_stage = (s & 3) == 3
        vm = (AD-1-s) + 3 + min(s, NS-AD) if s < AD else NS-1-s
        if s+1 < NS and not last_in_stage:
            wread(s+1)
            k(f"s_waitcnt vmcnt({vm}) lgkmcnt(5)")
        else:
            k(f"s_waitcnt vmcnt({vm}) lgkmcnt(0)")
            if s+1 < NS:
                k("s_barrier")
                wread(s+1)
        for j in range(5):
            c = "0" if s == 0 else vr(acc[j],4)
            k(f"v_mfma_f32_16x16x32_bf16 {vr(acc[j],4)}, {vr(W[s&1][j],4)}, {ar(A[s],4)}, {c}")
        if s + AD < NS: aload(s + AD)
    U = W[0][0]
    k("s_waitcnt vmcnt(0)")
    for i in range(10):
        k(f"""v_lshlrev_b32 v{U+2*i}, 16, v{res+i}
              v_and_b32 v{U+2*i+1}, 0xffff0000, v{res+i}""")
    for i in range(10):
        k(pk("v_pk_add_f32", U+2*i, (U+2*i,'p'), (acc[0]+2*i,'p')))
    for i in range(10):
        k(f"v_cvt_pk_bf16_f32 v{res+i}, v{U+2*i}, v{U+2*i+1}")
    if down:
        k(f"""buffer_store_dwordx4 {vr(res,4)}, v{vrm}, {IO}, 0 offen
              buffer_store_dwordx4 {vr(res+4,4)}, v{vrm}, {IO}, 0 offen offset:64
              buffer_store_dwordx2 {vr(res+8,2)}, v{vrm2}, {IO}, 0 offen offset:128""")
    else:
        k(f"""buffer_store_dwordx4 {vr(res,4)}, v{vhf}, {D}, 0 offen
              buffer_store_dwordx4 {vr(res+4,4)}, v{vhf}, {D}, 0 offen offset:2048
              buffer_store_dwordx2 {vr(res+8,2)}, v{vhf2}, {D}, 0 offen
              s_mov_b32 s{st1}, {hex(ONES)}
              v_mov_b32 v{t[4]}, 0
              v_mov_b32 v{t[5]}, 0""")
        for i in range(10):
            k(f"""v_dot2c_f32_bf16 v{t[4]}, s{st1}, v{res+i}
                  v_dot2c_f32_bf16 v{t[5]}, v{res+i}, v{res+i}""")
        k(f"""s_lshl_b32 s{st0}, s{sct}, 3
              s_add_u32 s{st0}, s{st0}, {STATS}
              v_lshlrev_b32 v{vR}, 6, v{vR}
              v_lshrrev_b32 v{t[1]}, 5, v{vl}
              v_permlane32_swap_b32 v{t[4]}, v{t[5]}
              v_lshl_add_u32 v{vR}, v{t[1]}, 2, v{vR}
              s_nop 0
              v_add_f32 v{t[4]}, v{t[4]}, v{t[5]}
              v_mov_b32 v{t[5]}, v{t[4]}
              s_nop 1
              v_permlane16_swap_b32 v{t[4]}, v{t[5]}
              s_nop 1
              v_add_f32 v{t[4]}, v{t[4]}, v{t[5]}
              buffer_store_dword v{t[4]}, v{vR}, {D}, s{st0} offen""")
    k(f"""{Lend}:
          s_endpgm""")
    return k
```

```python
from common import *
def gen_k4(NSLOT=7):
    NST = 20
    CS = NSLOT*20480
    k = Kern("k4_gateup_kernel", 256, 512, CS + 1024)
    sws = k.s(2); sw, smt, snt, st0, st1 = [k.s() for _ in range(5)]
    Lend = k.lab("end"); Lc = k.lab("comp")
    vl = k.v(); v16 = k.v()
    k(f"""s_load_dwordx2 s[{sws}:{sws+1}], s[0:1], 72
          s_cmp_ge_u32 s2, 256
          s_cbranch_scc1 {Lend}
          s_and_b32 s{smt}, s2, 1
          s_lshl_b32 s{smt}, s{smt}, 3
          s_bfe_u32 s{st0}, s2, 0x30003
          s_add_u32 s{smt}, s{smt}, s{st0}
          s_bfe_u32 s{snt}, s2, 0x20001
          s_lshl_b32 s{snt}, s{snt}, 2
          s_lshr_b32 s{st0}, s2, 6
          s_add_u32 s{snt}, s{snt}, s{st0}""")
    wave_id(k, sw, vl)
    k(f"""v_lshlrev_b32 v{v16}, 4, v{vl}
          s_waitcnt lgkmcnt(0)""")
    dws = k.srd(sws, WS_SIZE); D = f"s[{dws}:{dws+3}]"
    k(f"""s_cmp_lt_u32 s{sw}, 4
          s_cbranch_scc1 {Lc}""")
    m = k.vmark()
    soA, soW, smA, smW, slw = [k.s() for _ in range(5)]
    c = k.v(8); va = k.v()
    k(f"""s_sub_u32 s{slw}, s{sw}, 4
          s_lshl_b32 s{st0}, s{smt}, 2
          s_add_u32 s{st0}, s{st0}, s{slw}
          s_mul_i32 s{soA}, s{st0}, 40960
          s_add_u32 s{soA}, s{soA}, {HF}
          s_lshl_b32 s{smA}, s{slw}, 11
          s_mul_i32 s{smW}, s{slw}, 3072
          s_mul_i32 s{soW}, s{snt}, 245760
          s_add_u32 s{soW}, s{soW}, s{smW}
          s_add_u32 s{soW}, s{soW}, {WGUF}
          s_add_u32 s{smW}, s{smW}, 8192""")
    def issue(stage):
        slot = stage % NSLOT
        k(f"""s_add_u32 m0, s{smA}, {slot*20480}
              s_nop 0""")
        for p in range(2):
            k(f"buffer_load_dwordx4 v{v16}, {D}, s{soA} offen offset:{p*1024} lds")
        k(f"""s_add_u32 m0, s{smW}, {slot*20480}
              s_add_u32 s{soA}, s{soA}, 2048""")
        for p in range(3):
            k(f"buffer_load_dwordx4 v{v16}, {D}, s{soW} offen offset:{p*1024} lds")
        k(f"s_add_u32 s{soW}, s{soW}, 12288")
    for s in range(NSLOT): issue(s)
    k(f"""s_lshl_b32 s{st0}, s{slw}, 8
          v_lshl_add_u32 v{va}, v{vl}, 2, s{st0}
          s_mul_i32 s{st0}, s{snt}, 768
          s_add_u32 s{st0}, s{st0}, {CSG}""")
    for p in range(8):
        k(f"buffer_load_dword v{c+p}, v{va}, {D}, s{st0} offen")
        if p < 7: k(f"s_add_u32 s{st0}, s{st0}, {96*128}")
    issued = NSLOT-1
    for s in range(NST):
        extra = 8 if s < NSLOT else 0
        k(f"""s_waitcnt vmcnt({5*(issued-s) + extra})
              s_barrier""")
        if s >= 1 and s-1+NSLOT < NST:
            issue(s-1+NSLOT); issued = s-1+NSLOT
        if s == NSLOT:
            for p in range(1, 8): k(f"v_add_f32 v{c}, v{c}, v{c+p}")
            k(f"""v_add_u32 v{va}, {CS}, v{va}
                  ds_write_b32 v{va}, v{c}
                  s_waitcnt lgkmcnt(0)""")
    k("s_endpgm")
    k.vrelease(m)
    k(f"{Lc}:")
    swm, swn, sslot, scnt = [k.s() for _ in range(4)]
    acc = [[k.v(16, 4) for f in range(3)] for tf in range(2)]
    X = [[k.v(4, 4) for tf in range(2)] for _ in range(2)]
    W = [[k.v(4, 4) for f in range(3)] for _ in range(2)]
    pad = k.v(8, 4)
    ST = [k.v(8, 4) for tf in range(2)]
    ns = [k.v(2) for tf in range(2)]
    t = [k.v() for _ in range(4)]
    aX, aW, bX, bW, vo = [k.v() for _ in range(5)]
    k(f"""s_lshr_b32 s{swm}, s{sw}, 1
          s_and_b32 s{swn}, s{sw}, 1
          v_and_b32 v{t[0]}, 31, v{vl}
          v_lshrrev_b32 v{t[1]}, 5, v{vl}
          v_lshlrev_b32 v{t[2]}, 6, v{t[0]}
          v_lshl_add_u32 v{t[2]}, v{t[1]}, 5, v{t[2]}
          s_lshl_b32 s{st0}, s{smt}, 1
          s_add_u32 s{st0}, s{st0}, s{swm}
          s_lshl_b32 s{st1}, s{st0}, 12
          s_add_u32 s{st1}, s{st1}, {STATS}""")
    for tf in range(2):
        for h in range(2):
            k(f"buffer_load_dwordx4 {vr(ST[tf]+4*h,4)}, v{t[2]}, {D}, s{st1} offen offset:{tf*2048+h*16}")
    k(f"""s_mul_i32 s{st0}, s{st0}, {4*49152}
          s_mul_i32 s{st1}, s{snt}, {6*512}
          s_add_u32 s{st0}, s{st0}, s{st1}
          s_mul_i32 s{st1}, s{swn}, {3*512}
          s_add_u32 s{st0}, s{st0}, s{st1}
          s_add_u32 s{st0}, s{st0}, {HHF}
          v_lshrrev_b32 v{t[2]}, 4, v{t[0]}
          v_mul_u32_u24 v{t[2]}, 49152, v{t[2]}
          v_and_b32 v{t[0]}, 15, v{t[0]}
          v_lshl_add_u32 v{t[2]}, v{t[0]}, 4, v{t[2]}
          v_lshl_add_u32 v{t[2]}, v{t[1]}, 8, v{t[2]}
          v_add_u32 v{vo}, s{st0}, v{t[2]}
          s_lshl_b32 s{st0}, s{swm}, 12
          v_add_u32 v{bX}, s{st0}, v{v16}
          s_mul_i32 s{st0}, s{swn}, 3072
          s_add_u32 s{st0}, s{st0}, 8192
          v_add_u32 v{bW}, s{st0}, v{v16}
          v_mov_b32 v{aX}, v{bX}
          v_mov_b32 v{aW}, v{bW}""")
    for tf in range(2):
        for f in range(3):
            for r in range(16): k(f"v_mov_b32 v{acc[tf][f]+r}, 0")
    k("s_waitcnt vmcnt(0)")
    for tf in range(2):
        s_ = ST[tf]
        k(pk("v_pk_add_f32", s_, (s_,'p'), (s_+2,'p'))); k(pk("v_pk_add_f32", s_+4, (s_+4,'p'), (s_+6,'p')))
        k(pk("v_pk_add_f32", s_, (s_,'p'), (s_+4,'p')))
        k(f"""v_mov_b32 v{s_+2}, v{s_}
              v_mov_b32 v{s_+3}, v{s_+1}
              s_nop 0
              v_permlane32_swap_b32 v{s_}, v{s_+2}
              v_permlane32_swap_b32 v{s_+1}, v{s_+3}
              s_nop 1""")
        k(pk("v_pk_add_f32", s_, (s_,'p'), (s_+2,'p')))
        ln_scalars(k, s_, s_+1, s_+2, s_+3, ns[tf], ns[tf]+1)
        k(f"v_mul_f32 v{ns[tf]+1}, v{ns[tf]+1}, v{ns[tf]+1}")
    def reads(st, ks):
        for tf in range(2):
            k(f"ds_read_b128 {vr(X[st][tf],4)}, v{aX} offset:{tf*2048+ks*1024}")
        for f in range(3):
            k(f"ds_read_b128 {vr(W[st][f],4)}, v{aW} offset:{ks*6144+f*1024}")
    def mm(st):
        for f in range(3):
            for tf in range(2):
                k(f"v_mfma_f32_32x32x16_bf16 {vr(acc[tf][f],16)}, {vr(W[st][f],4)}, {vr(X[st][tf],4)}, {vr(acc[tf][f],16)}")
    Lloop = k.lab("loop"); Llast = k.lab("last")
    k(f"""s_mov_b32 s{sslot}, 0
          s_mov_b32 s{scnt}, {NST}
          s_barrier""")
    reads(0, 0)
    k(f"{Lloop}:")
    reads(1, 1)
    k(f"""s_add_u32 s{sslot}, s{sslot}, 20480
          s_cmp_eq_u32 s{sslot}, {NSLOT*20480}
          s_cselect_b32 s{sslot}, 0, s{sslot}
          s_sub_u32 s{scnt}, s{scnt}, 1
          s_waitcnt lgkmcnt(5)""")
    mm(0)
    k(f"""v_add_u32 v{aX}, s{sslot}, v{bX}
          v_add_u32 v{aW}, s{sslot}, v{bW}
          s_waitcnt lgkmcnt(0)
          s_cmp_eq_u32 s{scnt}, 0
          s_cbranch_scc1 {Llast}
          s_barrier""")
    reads(0, 0)
    mm(1)
    k(f"s_branch {Lloop}")
    k(f"{Llast}:")
    mm(1)
    csr = X[0][0]
    assert pad + 8 - csr == 48
    k(f"""s_mul_i32 s{st0}, s{swn}, 384
          s_add_u32 s{st0}, s{st0}, {CS}
          v_lshl_add_u32 v{t[0]}, v{t[1]}, 4, s{st0}
          s_nop 7""")
    for f in range(3):
        for g in range(4):
            k(f"ds_read_b128 {vr(csr+f*16+g*4,4)}, v{t[0]} offset:{f*128+g*32}")
    for f in range(3):
        k(f"s_waitcnt lgkmcnt({8-4*f})")
        for tf in range(2):
            a = acc[tf][f]
            for r in range(0, 16, 2):
                k(pk("v_pk_fma_f32", a+r, (csr+f*16+r,'p'), (ns[tf],'l'), (a+r,'p')))
            for r in (0, 2, 8, 10):
                k(pk("v_pk_mul_f32", a+r, (a+r,'p'), (ns[tf],'h')))
            for r in (0, 2, 8, 10):
                k(pk("v_pk_mul_f32", a+r, (a+r,'p'), (a+r+4,'p')))
            for i, r in enumerate((0, 2, 8, 10)):
                k(f"v_cvt_pk_bf16_f32 v{a+4+i}, v{a+r}, v{a+r+1}")
            if tf == 1: k(f"s_mov_b32 s{st1}, {2*49152}")
            k(f"buffer_store_dwordx4 {vr(a+4,4)}, v{vo}, {D}, {'0' if tf==0 else 's%d'%st1} offen offset:{f*512}")
    k(f"""{Lend}:
          s_endpgm""")
    return k
```

```python
import sys
from common import *
from k1 import gen_k1
NAME = "sequential_preLN__mha_block__glu_gated_bilinear__prompt"
def build(path, upto=5):
    ks = [gen_k1()]
    try:
        from k2 import gen_k2
        ks.append(gen_k2())
        from k35 import gen_k35
        ks.append(gen_k35(False))
        from k4 import gen_k4
        ks.append(gen_k4())
        ks.append(gen_k35(True))
    except ImportError as e:
        print("partial:", e)
    ks = ks[:upto]
    txt = assemble_file(ks, ks, "; generated by gen/gen.py (own generator)\n")
    open(path, "w").write(txt)
    for k in ks: print(k.name, "vgpr", k.maxv, "agpr", k.na, "sgpr", k.ns, "lines", len(k.L))
if __name__ == "__main__":
    build(sys.argv[1] if len(sys.argv) > 1 else f"cdna_kernels/{NAME}.s")
```

```python
import os
PROF = os.environ.get('PROF', '0') == '1'
PROFBASE = 32 << 20
class Kern:
    count = 0
    def __init__(self, name, grid, block, lds):
        self.name, self.grid, self.block, self.lds = name, grid, block, lds
        self.L = []
        self.nv = 1
        self.ns = 4
        self.na = 0
        self.maxv = 1
        self.maxs = 16
        self.uid = 0
        self.idx = Kern.count; Kern.count += 1
        if PROF:
            self.maxs = 100
            self("s_memrealtime s[92:93]\ns_memtime s[80:81]\nv_lshrrev_b32 v1, 6, v0\ns_nop 0\nv_readfirstlane_b32 s79, v1")
            for i in range(1, 6): self(f"s_mov_b32 s{80+2*i}, 0")
    def stamp(self, i):
        if PROF: self(f"s_memtime s[{80+2*i}:{81+2*i}]")
    def end(self):
        if PROF:
            self(f"""s_waitcnt vmcnt(0)
                     s_memtime s[90:91]
                     s_memrealtime s[94:95]
                     s_load_dwordx2 s[96:97], s[0:1], 72
                     s_mov_b32 s98, 0x4000000
                     s_mov_b32 s99, 0x20000
                     s_lshl_b32 s78, s2, 4
                     s_add_u32 s78, s78, s79
                     s_lshl_b32 s78, s78, 5
                     s_add_u32 s78, s78, {PROFBASE + self.idx*256*16*32}
                     s_mov_b64 exec, 1
                     s_waitcnt lgkmcnt(0)
                     v_mov_b32 v0, 0""")
            for i, r in enumerate([80, 82, 84, 86, 88, 90, 92, 94]): self(f"v_mov_b32 v{4+i}, s{r}")
            self("""buffer_store_dwordx4 v[4:7], v0, s[96:99], s78 offen
                    buffer_store_dwordx4 v[8:11], v0, s[96:99], s78 offen offset:16""")
        if PROF and os.environ.get('PROF2') == '1':
            self(f"""s_load_dwordx2 s[96:97], s[0:1], 64
                     s_waitcnt lgkmcnt(0)
                     s_sub_u32 s96, s96, {self.idx*512}
                     s_subb_u32 s97, s97, 0
                     s_mov_b32 s98, 256
                     s_not_b32 s92, s92
                     v_mov_b32 v1, s92
                     v_mov_b32 v2, s94
                     buffer_atomic_umax v1, v0, s[96:99], 0 offen offset:{self.idx*8}
                     buffer_atomic_umax v2, v0, s[96:99], 0 offen offset:{self.idx*8+4}""")
        self("s_endpgm")
    def __call__(self, s):
        for ln in s.strip("\n").split("\n"):
            ln = ln.strip()
            if ln:
                self.L.append(("" if ln.endswith(":") else "    ") + ln)
    def v(self, n=1, align=None):
        if align is None: align = 2 if n >= 2 else 1
        self.nv = (self.nv + align - 1) // align * align
        r = self.nv; self.nv += n
        self.maxv = max(self.maxv, self.nv)
        return r
    def vmark(self): return self.nv
    def vrelease(self, m): self.nv = m
    def a(self, n=1, align=None):
        if align is None: align = 2 if n >= 2 else 1
        self.na = (self.na + align - 1) // align * align
        r = self.na; self.na += n
        return r
    def s(self, n=1, align=None):
        if align is None: align = 4 if n >= 4 else (2 if n >= 2 else 1)
        self.ns = (self.ns + align - 1) // align * align
        r = self.ns; self.ns += n
        assert self.ns <= (78 if PROF else 100)
        self.maxs = max(self.maxs, self.ns)
        return r
    def lab(self, base):
        self.uid += 1
        return f"L_{self.name[:6]}_{base}_{self.uid}"
    def srd(self, ptr_s, nbytes):
        d = self.s(4)
        self(f"""s_mov_b32 s{d}, s{ptr_s}
                 s_mov_b32 s{d+1}, s{ptr_s+1}
                 s_mov_b32 s{d+2}, {hex(nbytes)}
                 s_mov_b32 s{d+3}, 0x20000""")
        return d
    def text(self):
        out = [f".globl {self.name}", ".p2align 8", f".type {self.name},@function", f"{self.name}:"]
        out += self.L
        return "\n".join(out) + "\n"
    def desc(self):
        acc = (self.maxv + 3) // 4 * 4
        assert acc <= 256, f"{self.name}: too many arch vgprs {self.maxv}"
        nfv = acc + self.na if self.na else self.maxv
        assert nfv <= 512
        return f""".p2align 6
.amdhsa_kernel {self.name}
  .amdhsa_next_free_vgpr {nfv}
  .amdhsa_next_free_sgpr {self.maxs}
  .amdhsa_accum_offset {acc}
  .amdhsa_group_segment_fixed_size 0
  .amdhsa_kernarg_size 80
  .amdhsa_user_sgpr_count 2
  .amdhsa_user_sgpr_kernarg_segment_ptr 1
  .amdhsa_system_sgpr_workgroup_id_x 1
.end_amdhsa_kernel
"""

def vr(b, n): return f"v[{b}:{b+n-1}]" if n > 1 else f"v{b}"
def ar(b, n): return f"a[{b}:{b+n-1}]" if n > 1 else f"a{b}"
def sr(b, n): return f"s[{b}:{b+n-1}]" if n > 1 else f"s{b}"

def assemble_file(kernels, launches, header_comment=""):
    out = header_comment
    for k in launches:
        out += f"; @launch kernel={k.name} grid=({k.grid},1,1) block=({k.block},1,1) lds={k.lds}\n"
    out += '.amdgcn_target "amdgcn-amd-amdhsa--gfx950"\n.text\n'
    for k in kernels:
        out += k.text()
    out += '.section .rodata,"a"\n'
    for k in kernels:
        out += k.desc()
    return out
```

```python
from common import *
def gen_k1(NSLOT=4):
    ST = NSLOT*32768
    k = Kern("k1_qkv_kernel", 256, 512, ST + 2048)
    sp = k.s(4); sws = k.s(2)
    smt, snt, sw, st0, st1 = k.s(), k.s(), k.s(), k.s(), k.s()
    Lend = k.lab("end"); Lload = k.lab("loader")
    vl = k.v()
    k(f"""s_load_dwordx4 s[{sp}:{sp+3}], s[0:1], 0
          s_load_dwordx2 s[{sws}:{sws+1}], s[0:1], 72
          s_cmp_ge_u32 s2, 256
          s_cbranch_scc1 {Lend}
          s_and_b32 s{smt}, s2, 3
          s_lshl_b32 s{smt}, s{smt}, 2
          s_bfe_u32 s{st0}, s2, 0x20003
          s_add_u32 s{smt}, s{smt}, s{st0}
          s_bfe_u32 s{snt}, s2, 0x10002
          s_lshl_b32 s{snt}, s{snt}, 3
          s_lshr_b32 s{st0}, s2, 5
          s_add_u32 s{snt}, s{snt}, s{st0}
          s_cmp_ge_u32 s{snt}, 15
          s_cbranch_scc1 {Lend}""")
    wave_id(k, sw, vl)
    k(f"""s_nop 3
          s_cmp_lt_u32 s{sw}, 4
          s_cbranch_scc1 L_k1_compute""")
    m = k.vmark()
    vA = [k.v() for _ in range(4)]; vB = [k.v() for _ in range(4)]
    t = [k.v() for _ in range(4)]
    slw, soA, soB, sm0 = k.s(), k.s(), k.s(), k.s()
    k(f"""s_sub_u32 s{slw}, s{sw}, 4
          s_lshl_b32 s{st0}, s{smt}, 7
          s_lshl_b32 s{st1}, s{slw}, 5
          s_add_u32 s{st0}, s{st0}, s{st1}
          v_bfe_u32 v{t[0]}, v{vl}, 2, 3
          v_add_u32 v{t[0]}, s{st0}, v{t[0]}
          s_movk_i32 s{st1}, 1280
          v_mul_lo_u32 v{t[0]}, v{t[0]}, s{st1}
          v_lshrrev_b32 v{t[1]}, 5, v{vl}
          v_lshl_add_u32 v{t[0]}, v{t[1]}, 6, v{t[0]}
          v_and_b32 v{t[1]}, 3, v{vl}""")
    for j in range(4):
        k(f"""v_xor_b32 v{t[2]}, {j}, v{t[1]}
              v_lshl_add_u32 v{vA[j]}, v{t[2]}, 4, v{t[0]}""")
        if j: k(f"v_add_u32 v{vA[j]}, {j*(10240-1024)}, v{vA[j]}")
    k(f"""s_lshl_b32 s{st0}, s{slw}, 4
          v_lshrrev_b32 v{t[0]}, 4, v{vl}
          v_lshlrev_b32 v{t[1]}, 2, v{t[0]}
          v_add_u32 v{t[0]}, s{st0}, v{t[0]}
          s_movk_i32 s{st1}, 3840
          v_mul_lo_u32 v{t[0]}, v{t[0]}, s{st1}
          v_and_b32 v{t[2]}, 15, v{vl}
          v_xor_b32 v{t[2]}, v{t[2]}, v{t[1]}
          v_lshl_add_u32 v{t[0]}, v{t[2]}, 4, v{t[0]}
          s_lshl_b32 s{st0}, s{snt}, 8
          v_add_u32 v{vB[0]}, s{st0}, v{t[0]}""")
    for j in range(1, 4):
        k(f"v_add_u32 v{vB[j]}, {j*(4*3840-1024)}, v{vB[0]}")
    k(f"""s_lshl_b32 s{sm0}, s{slw}, 12
          s_waitcnt lgkmcnt(0)""")
    dx = k.srd(sp, 2048*1280); dw = k.srd(sp+2, 640*3840)
    def issue(stage):
        slot = stage % NSLOT
        k(f"""s_add_u32 m0, s{sm0}, {slot*32768}
              s_mov_b32 s{soA}, {stage*128}
              s_mov_b32 s{soB}, {stage*64*3840}""")
        for j in range(4):
            k(f"buffer_load_dwordx4 v{vA[j]}, s[{dx}:{dx+3}], s{soA} offen offset:{j*1024} lds")
        k(f"""s_add_u32 m0, s{sm0}, {slot*32768+16384}
              s_nop 0""")
        for j in range(4):
            k(f"buffer_load_dwordx4 v{vB[j]}, s[{dw}:{dw+3}], s{soB} offen offset:{j*1024} lds")
    for s in range(NSLOT): issue(s)
    k.stamp(1)
    issued = NSLOT-1
    for s in range(10):
        k(f"""s_waitcnt vmcnt({8*(issued-s)})
              s_barrier""")
        if s >= 1 and s-1+NSLOT < 10:
            issue(s-1+NSLOT); issued = s-1+NSLOT
    k.end()
    k.vrelease(m)
    k("L_k1_compute:")
    swm, swn, sslot, scnt, sscale, stile = k.s(), k.s(), k.s(), k.s(), k.s(), k.s()
    acc = [[k.v(16, 4) for nb in range(2)] for mb in range(2)]
    fx = [[k.v(4, 4) for mb in range(2)] for st in range(2)]
    fw = [[k.v(4, 4) for nb in range(2)] for st in range(2)]
    g1, g2, gc = k.v(4, 4), k.v(4, 4), k.v(4, 4)
    ones = k.v(2)
    aA = [[k.v() for p in range(2)] for mb in range(2)]; aB = [k.v() for _ in range(2)]
    bA = [[k.v() for p in range(2)] for mb in range(2)]; bB = [k.v() for _ in range(2)]
    al = aA[0]+aA[1]+aB; bl = bA[0]+bA[1]+bB
    vhi, vl31 = k.v(), k.v()
    t0_ = k.v(8); t = [t0_+i for i in range(8)]
    oaddr = k.v(16)
    k(f"""s_lshr_b32 s{swm}, s{sw}, 1
          s_and_b32 s{swn}, s{sw}, 1
          v_mov_b32 v{ones}, {hex(ONES)}
          v_mov_b32 v{ones+1}, {hex(ONES)}
          v_lshrrev_b32 v{vhi}, 5, v{vl}
          v_and_b32 v{vl31}, 31, v{vl}""")
    k(f"""s_lshl_b32 s{st0}, s{sw}, 12
          v_lshrrev_b32 v{t[1]}, 3, v{vl31}
          v_and_b32 v{t[0]}, 7, v{vl31}
          v_lshlrev_b32 v{t[0]}, 6, v{t[0]}
          v_lshl_add_u32 v{t[0]}, v{t[1]}, 10, v{t[0]}
          v_add_u32 v{t[0]}, s{st0}, v{t[0]}""")
    for p in range(2):
        k(f"""v_or_b32 v{t[2]}, {p*2}, v{vhi}
              v_xor_b32 v{t[2]}, v{t[2]}, v{t[1]}
              v_lshl_add_u32 v{bA[0][p]}, v{t[2]}, 4, v{t[0]}
              v_xor_b32 v{bA[1][p]}, 4096, v{bA[0][p]}""")
    k(f"""v_bfe_u32 v{t[0]}, v{vl}, 2, 2
          v_lshl_add_u32 v{t[1]}, v{vhi}, 3, v{t[0]}
          v_lshlrev_b32 v{t[1]}, 8, v{t[1]}
          v_and_b32 v{t[2]}, 1, v{vl}
          v_lshl_add_u32 v{t[1]}, v{t[2]}, 3, v{t[1]}
          v_add_u32 v{t[1]}, 16384, v{t[1]}
          v_bfe_u32 v{t[2]}, v{vl}, 4, 1
          v_lshlrev_b32 v{t[2]}, 1, v{t[2]}
          v_bfe_u32 v{t[3]}, v{vl}, 1, 1
          v_or_b32 v{t[2]}, v{t[2]}, v{t[3]}
          s_lshl_b32 s{st0}, s{swn}, 1
          s_add_u32 s{st0}, s{st0}, s{swm}
          s_lshl_b32 s{st1}, s{st0}, 2
          v_or_b32 v{t[2]}, s{st1}, v{t[2]}
          v_lshlrev_b32 v{t[0]}, 2, v{t[0]}
          v_xor_b32 v{t[2]}, v{t[2]}, v{t[0]}
          v_lshl_add_u32 v{bB[0]}, v{t[2]}, 4, v{t[1]}
          v_xor_b32 v{bB[1]}, 64, v{bB[0]}""")
    sfb = k.s()
    k(f"""s_mov_b32 s{sfb}, s{st0}
          s_lshl_b32 s{stile}, s{smt}, 2
          s_add_u32 s{stile}, s{stile}, s{sw}""")
    for a, b in zip(al, bl):
        k(f"v_mov_b32 v{a}, v{b}")
    for base, n in [(acc[0][0],16),(acc[0][1],16),(acc[1][0],16),(acc[1][1],16),(g1,4),(g2,4),(gc,4)]:
        for r in range(n): k(f"v_mov_b32 v{base+r}, 0")
    k("s_waitcnt lgkmcnt(0)")
    dws = k.srd(sws, WS_SIZE)
    LV = k.lab("vpath")
    k(f"""s_cmp_ge_u32 s{snt}, 10
          s_cbranch_scc1 {LV}""")

    def reads(st, ks):
        for mb in range(2):
            k(f"ds_read_b128 {vr(fx[st][mb],4)}, v{aA[mb][ks&1]} offset:{(ks>>1)*512}")
        for nb in range(2):
            for q in range(2):
                k(f"ds_read_b64_tr_b16 {vr(fw[st][nb]+2*q,2)}, v{aB[nb]} offset:{ks*4096+q*1024}")

    def mainloop(isV):
        def mm(st):
            x0, w0 = fx[st][0], fw[st][0]
            sm = []
            for h in range(2):
                sm.append(f"v_mfma_f32_4x4x4_16b_bf16 {vr(g1,4)}, {vr(ones,2)}, {vr(x0+2*h,2)}, {vr(g1,4)}")
                sm.append(f"v_mfma_f32_4x4x4_16b_bf16 {vr(g2,4)}, {vr(x0+2*h,2)}, {vr(x0+2*h,2)}, {vr(g2,4)}")
                sm.append(f"v_mfma_f32_4x4x4_16b_bf16 {vr(gc,4)}, {vr(ones,2)}, {vr(w0+2*h,2)}, {vr(gc,4)}")
            n = 0
            for mb in range(2):
                for nb in range(2):
                    a, b = (fx[st][mb], fw[st][nb]) if isV else (fw[st][nb], fx[st][mb])
                    k(f"v_mfma_f32_32x32x16_bf16 {vr(acc[mb][nb],16)}, {vr(a,4)}, {vr(b,4)}, {vr(acc[mb][nb],16)}")
                    for d in sm[[0,2,3,5][n]:[2,3,5,6][n]]: k(d)
                    n += 1
        Lloop = k.lab("loop"); Llast = k.lab("last")
        k(f"""s_mov_b32 s{sslot}, 0
              s_mov_b32 s{scnt}, 10""")
        k.stamp(1); k("s_barrier"); k.stamp(2)
        reads(0, 0)
        k(f"{Lloop}:")
        for ks in range(3):
            reads((ks+1)&1, ks+1)
            if ks == 2:
                k(f"""s_add_u32 s{sslot}, s{sslot}, 32768
                      s_cmp_eq_u32 s{sslot}, {NSLOT*32768}
                      s_cselect_b32 s{sslot}, 0, s{sslot}
                      s_sub_u32 s{scnt}, s{scnt}, 1""")
            k("s_waitcnt lgkmcnt(6)")
            mm(ks&1)
        for a, b in zip(al, bl):
            k(f"v_add_u32 v{a}, s{sslot}, v{b}")
        k(f"""s_waitcnt lgkmcnt(0)
              s_cmp_eq_u32 s{scnt}, 0
              s_cbranch_scc1 {Llast}
              s_barrier""")
        reads(0, 0)
        mm(1)
        k(f"s_branch {Lloop}")
        k(f"{Llast}:")
        mm(1)
        k.stamp(3)

    def stats_exchange(scale_q):
        s1, s2, nm, rs = t[0], t[1], t[4], t[5]
        assert nm % 2 == 0 and rs == nm+1
        k(f"""v_and_b32 v{t[2]}, 1, v{vl}
              v_cmp_eq_u32 vcc, 1, v{t[2]}
              v_and_b32 v{t[2]}, 2, v{vl}
              s_nop 3
              v_cndmask_b32 v{s2}, v{g2}, v{g2+1}, vcc
              v_cndmask_b32 v{t[3]}, v{g2+2}, v{g2+3}, vcc
              v_cmp_eq_u32 vcc, 2, v{t[2]}
              v_mov_b32 v{s1}, v{g1}
              v_mov_b32 v{t[6]}, v{gc}
              v_cndmask_b32 v{s2}, v{s2}, v{t[3]}, vcc
              v_permlane32_swap_b32 v{s1}, v{g1}
              v_mov_b32 v{t[3]}, v{s2}
              v_permlane32_swap_b32 v{t[6]}, v{gc}
              v_add_f32 v{s1}, v{s1}, v{g1}
              v_permlane32_swap_b32 v{s2}, v{t[3]}
              v_add_f32 v{t[6]}, v{t[6]}, v{gc}
              s_nop 0
              v_add_f32 v{s2}, v{s2}, v{t[3]}""")
        ln_scalars(k, s1, s2, t[2], t[3], nm, rs)
        if scale_q:
            k(f"v_mul_f32 v{rs}, s{sscale}, v{rs}")
        k(f"""s_lshl_b32 s{st0}, s{sw}, 7
              v_lshl_add_u32 v{t[2]}, v{vl31}, 2, s{st0}
              s_lshl_b32 s{st0}, s{sfb}, 7
              v_lshl_add_u32 v{t[3]}, v{vl31}, 2, s{st0}
              v_add_u32 v{t[2]}, {ST}, v{t[2]}
              v_add_u32 v{t[3]}, {ST}, v{t[3]}
              ds_write2_b32 v{t[2]}, v{nm}, v{rs} offset1:128
              ds_write_b32 v{t[3]}, v{t[6]} offset:1024
              s_waitcnt lgkmcnt(0)
              s_barrier""")
        k.stamp(4)

    k(f"""s_mov_b32 s{sscale}, 1.0
          s_cmp_lt_u32 s{snt}, 5
          s_cselect_b32 s{sscale}, {f32(QSCALE)}, s{sscale}
          s_mov_b32 s{st1}, 52429
          v_lshlrev_b32 v{t[6]}, 4, v{vl31}
          v_lshlrev_b32 v{t[7]}, 3, v{vl31}
          v_add_u32 v{t[7]}, {QKB}, v{t[7]}""")
    sA = [k.s(), k.s()]; sB = [k.s(), k.s()]
    k(f"""s_lshl_b32 s{sA[0]}, s{stile}, 10
          s_xor_b32 s{sA[1]}, s{sA[0]}, 1024
          s_lshl_b32 s{sB[0]}, s{stile}, 8
          s_xor_b32 s{sB[1]}, s{sB[0]}, 256""")
    for nb in range(2):
        k(f"""s_xor_b32 s{st0}, s{sfb}, {nb}
              s_lshl_b32 s{st0}, s{st0}, 3
              s_lshl_b32 s3, s{snt}, 5
              s_add_u32 s{st0}, s{st0}, s3
              v_add_u32 v{t[0]}, s{st0}, v{vhi}""")
        for g4 in range(4):
            o = oaddr + nb*4 + g4
            k(f"""v_add_u32 v{t[1]}, {2*g4}, v{t[0]}
                  v_mul_u32_u24 v{t[2]}, s{st1}, v{t[1]}
                  v_lshrrev_b32 v{t[2]}, 18, v{t[2]}
                  v_mad_i32_i24 v{t[1]}, v{t[2]}, -5, v{t[1]}
                  v_cmp_eq_u32 vcc, 4, v{t[1]}
                  v_lshl_add_u32 v{t[3]}, v{t[2]}, 16, v{t[6]}
                  v_lshl_add_u32 v{t[4]}, v{t[2]}, 14, v{t[7]}
                  v_lshrrev_b32 v{t[2]}, 1, v{t[1]}
                  v_and_b32 v{t[1]}, 1, v{t[1]}
                  v_lshl_add_u32 v{t[3]}, v{t[2]}, 9, v{t[3]}
                  v_lshl_add_u32 v{t[3]}, v{t[1]}, 3, v{t[3]}
                  v_add_u32 v{t[1]}, s{sA[0]}, v{t[3]}
                  v_add_u32 v{t[2]}, s{sB[0]}, v{t[4]}
                  v_cndmask_b32 v{o}, v{t[1]}, v{t[2]}, vcc
                  v_add_u32 v{t[1]}, s{sA[1]}, v{t[3]}
                  v_add_u32 v{t[2]}, s{sB[1]}, v{t[4]}
                  v_cndmask_b32 v{o+8}, v{t[1]}, v{t[2]}, vcc""")
    mainloop(False)
    stats_exchange(True)
    csr = fx[0][0]
    assert fw[1][1] + 4 - csr == 32
    st_pair = [g1, g1+2]
    k(f"""v_xor_b32 v{t[0]}, 128, v{t[2]}
          ds_read2_b32 v[{st_pair[1]}:{st_pair[1]+1}], v{t[0]} offset1:128
          s_lshl_b32 s{st0}, s{sfb}, 7
          v_lshl_add_u32 v{t[1]}, v{vhi}, 4, s{st0}
          v_add_u32 v{t[1]}, {ST+1024}, v{t[1]}
          v_xor_b32 v{t[3]}, 128, v{t[1]}
          v_mov_b32 v{st_pair[0]}, v{t[4]}
          v_mov_b32 v{st_pair[0]+1}, v{t[5]}""")
    for nb in range(2):
        for g4 in range(4):
            k(f"ds_read_b128 {vr(csr+nb*16+g4*4,4)}, v{t[1] if nb==0 else t[3]} offset:{g4*32}")
    for nb in range(2):
        k(f"s_waitcnt lgkmcnt({4 if nb==0 else 0})")
        for mb in range(2):
            a = acc[mb][nb]; sp_ = st_pair[mb]
            for r in range(0, 16, 2):
                k(pk("v_pk_fma_f32", a+r, (csr+nb*16+r,'p'), (sp_,'l'), (a+r,'p')))
            for r in range(0, 16, 2):
                k(pk("v_pk_mul_f32", a+r, (a+r,'p'), (sp_,'h')))
            for g4 in range(4):
                k(f"""v_cvt_pk_bf16_f32 v{a+4*g4}, v{a+4*g4}, v{a+4*g4+1}
                      v_cvt_pk_bf16_f32 v{a+4*g4+1}, v{a+4*g4+2}, v{a+4*g4+3}
                      buffer_store_dwordx2 v[{a+4*g4}:{a+4*g4+1}], v{oaddr+mb*8+nb*4+g4}, s[{dws}:{dws+3}], 0 offen""")
    k.end()
    k(f"""{LV}:
          s_mov_b32 s{st1}, 52429
          s_mul_i32 s{sA[0]}, s{stile}, 1280
          s_xor_b32 s{st0}, s{stile}, 1
          s_mul_i32 s{sA[1]}, s{st0}, 1280
          s_mov_b32 s{sB[0]}, 81920
          v_mul_u32_u24 v{t[5]}, 320, v{vhi}
          v_add_u32 v{t[5]}, {VF}, v{t[5]}""")
    for nb in range(2):
        k(f"""s_xor_b32 s{st0}, s{sfb}, {nb}
              s_lshl_b32 s{st0}, s{st0}, 5
              s_lshl_b32 s3, s{snt}, 7
              s_add_u32 s{st0}, s{st0}, s3
              s_sub_u32 s{st0}, s{st0}, 1280
              v_add_u32 v{t[1]}, s{st0}, v{vl31}
              v_mul_u32_u24 v{t[2]}, s{st1}, v{t[1]}
              v_lshrrev_b32 v{t[2]}, 20, v{t[2]}
              v_mul_u32_u24 v{t[3]}, 20, v{t[2]}
              v_sub_u32 v{t[1]}, v{t[1]}, v{t[3]}
              v_mad_u32_u24 v{t[2]}, v{t[2]}, s{sB[0]}, v{t[5]}
              v_lshl_add_u32 v{t[2]}, v{t[1]}, 4, v{t[2]}
              v_add_u32 v{oaddr+nb}, s{sA[0]}, v{t[2]}
              v_add_u32 v{oaddr+2+nb}, s{sA[1]}, v{t[2]}""")
    mainloop(True)
    stats_exchange(False)
    assert t[6] % 2 == 0
    k(f"""v_xor_b32 v{t[0]}, 128, v{t[3]}
          ds_read_b32 v{t[7]}, v{t[0]} offset:1024
          s_lshl_b32 s{st0}, s{sw}, 7
          v_lshl_add_u32 v{t[1]}, v{vhi}, 4, s{st0}
          v_add_u32 v{t[1]}, {ST}, v{t[1]}
          v_xor_b32 v{t[3]}, 128, v{t[1]}""")
    for mb in range(2):
        for h in range(2):
            for g4 in range(4):
                k(f"ds_read_b128 {vr(csr+h*16+g4*4,4)}, v{t[1] if mb==0 else t[3]} offset:{g4*32+h*512}")
        k(f"s_waitcnt lgkmcnt(0)")
        for nb in range(2):
            a = acc[mb][nb]
            for r in range(0, 16, 2):
                k(pk("v_pk_fma_f32", a+r, (csr+r,'p'), (t[6],'lh'[nb]), (a+r,'p')))
            for r in range(0, 16, 2):
                k(pk("v_pk_mul_f32", a+r, (a+r,'p'), (csr+16+r,'p')))
            for m_ in range(2):
                for i in range(4):
                    k(f"v_cvt_pk_bf16_f32 v{a+8*m_+i}, v{a+8*m_+2*i}, v{a+8*m_+2*i+1}")
                k(f"buffer_store_dwordx4 {vr(a+8*m_,4)}, v{oaddr+2*mb+nb}, s[{dws}:{dws+3}], 0 offen offset:{m_*640}")
    k.end()
    k(f"{Lend}:\ns_endpgm")
    return k
```

```python
from common import *
XCH = 0
FLG = 24576
LGU = 25600
LDW = LGU + 20480
def gen_k2():
    k = Kern("k2_attn_kernel", 256, 640, LDW + 40960)
    sws = k.s(2); sw, st0, st1 = k.s(), k.s(), k.s()
    Lend = k.lab("end")
    vl = k.v()
    k(f"""s_load_dwordx2 s[{sws}:{sws+1}], s[0:1], 72
          s_cmp_ge_u32 s2, 256
          s_cbranch_scc1 {Lend}""")
    wave_id(k, sw, vl)
    k(f"""s_nop 3
          s_cmp_lt_u32 s{sw}, 8
          s_cbranch_scc1 L_k2_attn
          s_cmp_eq_u32 s{sw}, 9
          s_cbranch_scc1 L_k2_dw""")
    m = k.vmark(); ms = k.ns
    sp = k.s(4); sq, spart, so = k.s(), k.s(), k.s()
    sF = [k.s() for _ in range(4)]
    t = [k.v() for _ in range(4)]
    vg, a1, a2, vst = k.v(), k.v(), k.v(), k.v()
    ones = k.v(2); cs = [k.v(4, 4) for _ in range(4)]
    fr = [k.v(4, 4) for _ in range(20)]
    k(f"""s_cmp_ge_u32 s2, 192
          s_cbranch_scc1 {Lend}
          s_load_dwordx4 s[{sp}:{sp+3}], s[0:1], 32
          s_lshr_b32 s{sq}, s2, 3
          s_and_b32 s{spart}, s2, 7
          v_lshrrev_b32 v{t[0]}, 3, v{vl}
          v_mul_u32_u24 v{t[0]}, 3072, v{t[0]}
          v_and_b32 v{t[1]}, 7, v{vl}
          v_lshl_add_u32 v{vg}, v{t[1]}, 4, v{t[0]}
          s_mul_i32 s{so}, s{spart}, {80*3072}
          s_lshl_b32 s{st0}, s{sq}, 7
          s_add_u32 s{so}, s{so}, s{st0}
          s_waitcnt lgkmcnt(0)""")
    dg = k.srd(sp, 640*3072); du = k.srd(sp+2, 640*3072); dws = k.srd(sws, WS_SIZE)
    for p in range(10):
        k(f"""s_mov_b32 m0, {LGU + p*1024}
              s_nop 0
              buffer_load_dwordx4 v{vg}, s[{dg}:{dg+3}], s{so} offen lds
              s_mov_b32 m0, {LGU + 10240 + p*1024}
              s_nop 0
              buffer_load_dwordx4 v{vg}, s[{du}:{du+3}], s{so} offen lds
              s_add_u32 s{so}, s{so}, {8*3072}""")
    k(f"""v_bfe_u32 v{t[0]}, v{vl}, 1, 1
          v_mul_u32_u24 v{t[0]}, 10240, v{t[0]}
          v_bfe_u32 v{t[1]}, v{vl}, 4, 1
          v_lshl_add_u32 v{t[0]}, v{t[1]}, 4, v{t[0]}
          v_and_b32 v{t[1]}, 1, v{vl}
          v_lshl_add_u32 v{t[0]}, v{t[1]}, 3, v{t[0]}
          v_bfe_u32 v{t[1]}, v{vl}, 2, 2
          v_lshl_add_u32 v{t[0]}, v{t[1]}, 7, v{t[0]}
          v_add_u32 v{t[0]}, {LGU}, v{t[0]}
          v_lshrrev_b32 v{t[1]}, 5, v{vl}
          v_lshl_add_u32 v{a2}, v{t[1]}, 10, v{t[0]}
          v_lshlrev_b32 v{vst}, 4, v{vl}
          v_mov_b32 v{ones}, {hex(ONES)}
          v_mov_b32 v{ones+1}, {hex(ONES)}""")
    for f in range(4):
        k(f"""s_lshl_b32 s{st0}, s{sq}, 2
              s_add_u32 s{st0}, s{st0}, {f}
              s_mul_i32 s{st1}, s{st0}, 43
              s_lshr_b32 s{st1}, s{st1}, 8
              s_mul_i32 s{st1}, s{st1}, {245760 - 6*1024}
              s_lshl_b32 s{st0}, s{st0}, 10
              s_add_u32 s{st0}, s{st0}, s{st1}
              s_mul_i32 s{st1}, s{spart}, {5*6144}
              s_add_u32 s{st0}, s{st0}, s{st1}
              s_add_u32 s{sF[f]}, s{st0}, {WGUF}""")
    k.stamp(1)
    k("s_waitcnt vmcnt(0)")
    k.stamp(2)
    for s5 in range(5):
        for f in range(4):
            for q in range(2):
                a, row = a2, 16*s5 + 4*q
                k(f"ds_read_b64_tr_b16 {vr(fr[s5*4+f]+2*q,2)}, v{a} offset:{row*128+f*32}")
        if s5 >= 1:
            pass
    for s5 in range(5):
        k(f"s_waitcnt lgkmcnt({min(15, 8*(4-s5))})")
        for f in range(4):
            k(f"buffer_store_dwordx4 {vr(fr[s5*4+f],4)}, v{vst}, s[{dws}:{dws+3}], s{sF[f]} offen")
            if s5 < 4: k(f"s_add_u32 s{sF[f]}, s{sF[f]}, 6144")
        for h in range(2):
            for f in range(4):
                c = "0" if (s5 == 0 and h == 0) else vr(cs[f],4)
                k(f"v_mfma_f32_4x4x4_16b_bf16 {vr(cs[f],4)}, {vr(ones,2)}, {vr(fr[s5*4+f]+2*h,2)}, {c}")
    k(f"""s_mul_i32 s{st0}, s{spart}, {96*128}
          s_lshl_b32 s{st1}, s{sq}, 9
          s_add_u32 s{st0}, s{st0}, s{st1}
          s_add_u32 s{st0}, s{st0}, {CSG}
          v_lshlrev_b32 v{vst}, 2, v{vl}
          s_nop 1""")
    for f in range(4):
        k(f"v_permlane32_swap_b32 v{cs[f]}, v{cs[f]+1}")
    k("s_mov_b32 exec_hi, 0")
    for f in range(4):
        k(f"""v_add_f32 v{cs[f]}, v{cs[f]}, v{cs[f]+1}
              buffer_store_dword v{cs[f]}, v{vst}, s[{dws}:{dws+3}], s{st0} offen offset:{f*128}""")
    k.end()
    k.vrelease(m); k.ns = ms
    k("L_k2_dw:")
    sp = k.s(2); sp2 = k.s(2); su, sbase, sA, sB, sC, so, sct, snb = [k.s() for _ in range(8)]
    t = [k.v() for _ in range(4)]
    v16, v16b, ard, ard2 = k.v(), k.v(), k.v(), k.v()
    fr = [k.v(4, 4) for _ in range(20)]
    k(f"""s_cmp_lt_u32 s2, 188
          s_cbranch_scc1 {Lend}
          s_load_dwordx2 s[{sp}:{sp+1}], s[0:1], 48
          s_load_dwordx2 s[{sp2}:{sp2+1}], s[0:1], 16
          s_sub_u32 s{su}, s2, 188
          v_lshlrev_b32 v{v16}, 4, v{vl}
          v_add_u32 v{v16b}, 4096, v{v16}
          s_waitcnt lgkmcnt(0)
          s_cmp_ge_u32 s{su}, 48
          s_cbranch_scc1 L_k2_wo
          s_mul_i32 s{sbase}, s{su}, {32*1280}
          s_mov_b32 s{sA}, {16*1280}
          s_mov_b32 s{sB}, {8*1280}
          s_mov_b32 s{sC}, {4*1280}
          s_mul_i32 s{so}, s{su}, 5120
          s_add_u32 s{so}, s{so}, {WDF}
          s_mov_b32 s{sct}, {48*5120}
          s_mov_b32 s{snb}, {1536*1280}
          s_branch L_k2_dwgo
          L_k2_wo:
          s_mov_b64 s[{sp}:{sp+1}], s[{sp2}:{sp2+1}]
          s_sub_u32 s{su}, s{su}, 48
          s_mul_i32 s{so}, s{su}, 5120
          s_add_u32 s{so}, s{so}, {WOF}
          s_mov_b32 s{sct}, {20*5120}
          s_mov_b32 s{snb}, {640*1280}
          s_mul_i32 s{sbase}, s{su}, {40*1280}
          s_mov_b32 s{sA}, {20*1280}
          s_mov_b32 s{sB}, {8*1280}
          s_mov_b32 s{sC}, {4*1280}
          s_cmp_lt_u32 s{su}, 16
          s_cbranch_scc1 L_k2_dwgo
          s_mul_i32 s{sbase}, s{su}, {160*1280}
          s_sub_u32 s{sbase}, s{sbase}, {(160*16-16)*1280}
          s_mov_b32 s{sA}, {80*1280}
          s_mov_b32 s{sB}, {20*1280}
          s_mov_b32 s{sC}, {40*1280}
          L_k2_dwgo:""")
    dsrc = k.srd(sp, 0); dws = k.srd(sws, WS_SIZE)
    k(f"s_mov_b32 s{dsrc+2}, s{snb}")
    for g in range(8):
        k(f"s_mov_b32 s{st0}, s{sbase}")
        if g & 4: k(f"s_add_u32 s{st0}, s{st0}, s{sA}")
        if g & 2: k(f"s_add_u32 s{st0}, s{st0}, s{sB}")
        if g & 1: k(f"s_add_u32 s{st0}, s{st0}, s{sC}")
        k(f"""s_mov_b32 m0, {LDW + g*5120}
              s_nop 0""")
        for p in range(4):
            k(f"buffer_load_dwordx4 v{v16}, s[{dsrc}:{dsrc+3}], s{st0} offen offset:{p*1024} lds")
        k(f"""s_mov_b32 m0, {LDW + g*5120 + 4096}
              s_nop 0
              buffer_load_dwordx4 v{v16b}, s[{dsrc}:{dsrc+3}], s{st0} offen lds""")
    k(f"""v_lshrrev_b32 v{t[0]}, 5, v{vl}
          v_lshlrev_b32 v{t[0]}, 4, v{t[0]}
          v_bfe_u32 v{t[1]}, v{vl}, 2, 3
          v_add_u32 v{t[0]}, v{t[0]}, v{t[1]}
          v_mul_u32_u24 v{t[0]}, 1280, v{t[0]}
          v_and_b32 v{t[1]}, 3, v{vl}
          v_add_u32 v{t[0]}, {LDW}, v{t[0]}
          v_lshl_add_u32 v{ard}, v{t[1]}, 4, v{t[0]}
          v_lshl_add_u32 v{ard2}, v{t[1]}, 3, v{t[0]}
          s_waitcnt vmcnt(0)""")
    for half in range(2):
        for i in range(20):
            for q in range(2):
                ct, j5 = half*4 + i//5, i % 5
                a, co = (ard, (j5>>1)*64 + (j5&1)*8) if j5 < 4 else (ard2, 128)
                k(f"ds_read_b64_tr_b16 {vr(fr[i]+2*q,2)}, v{a} offset:{q*10240+ct*160+co}")
        k("s_waitcnt lgkmcnt(0)")
        for i in range(20):
            j5 = i % 5
            if j5 < 4: k(f"buffer_store_dwordx4 {vr(fr[i],4)}, v{v16}, s[{dws}:{dws+3}], s{so} offen offset:{j5*1024}")
            else:
                k(f"""buffer_store_dwordx4 {vr(fr[i],4)}, v{v16b}, s[{dws}:{dws+3}], s{so} offen
                      s_add_u32 s{so}, s{so}, s{sct}""")
        if half == 0: k("s_waitcnt vmcnt(0)")
    k.end()
    k.vrelease(m); k.ns = ms
    k("L_k2_attn:")
    shead, sqt, skh, sKA, sKB, sV, scnt, ssec, sKA0, sKB0, sV0 = [k.s() for _ in range(11)]
    smask = k.s(2)
    S = [k.v(16, 4) for _ in range(2)]; O = [k.v(16, 4) for _ in range(2)]; NM = [k.v(16, 4) for _ in range(2)]
    P = [k.v(8, 4) for _ in range(2)]
    QA = [k.v(4, 4) for _ in range(2)]; KA = [k.v(4, 4) for _ in range(2)]
    V = [[k.v(4, 4) for _ in range(2)] for _ in range(2)]
    QB = [k.v(2) for _ in range(2)]; KB = [k.v(2) for _ in range(2)]
    vKA, vKB, vV = k.v(), k.v(), k.v()
    mx = [k.v(), k.v()]
    t = [k.v() for _ in range(4)]
    k(f"""s_and_b32 s{shead}, s2, 7
          s_lshl_b32 s{shead}, s{shead}, 2
          s_bfe_u32 s{st0}, s2, 0x20003
          s_add_u32 s{shead}, s{shead}, s{st0}
          s_lshr_b32 s{skh}, s{sw}, 2
          s_lshr_b32 s{sqt}, s2, 5
          s_lshl_b32 s{sqt}, s{sqt}, 2
          s_and_b32 s{st0}, s{sw}, 3
          s_add_u32 s{sqt}, s{sqt}, s{st0}
          s_lshl_b32 s{sqt}, s{sqt}, 1
          s_add_u32 s{sqt}, s{sqt}, s{skh}
          v_lshlrev_b32 v{vKA}, 4, v{vl}
          v_and_b32 v{t[0]}, 31, v{vl}
          v_lshlrev_b32 v{vKB}, 3, v{t[0]}
          v_lshrrev_b32 v{t[1]}, 5, v{vl}
          v_mul_u32_u24 v{t[1]}, 320, v{t[1]}
          v_lshl_add_u32 v{vV}, v{t[0]}, 4, v{t[1]}
          s_mov_b32 s{smask}, 0x000fffff
          s_mov_b32 s{smask+1}, 0x000fffff
          s_mov_b32 s{ssec}, 0""")
    for i in range(2):
        for r in range(2): k(f"v_mov_b32 v{QB[i]+r}, 0")
    for i in range(2):
        for j in range(2):
            for r in range(4): k(f"v_mov_b32 v{V[i][j]+r}, {hex(ONES)}")
    k("s_waitcnt lgkmcnt(0)")
    dws = k.srd(sws, WS_SIZE)
    D = f"s[{dws}:{dws+3}]"
    KM = P[0]
    k(f"""s_lshl_b32 s{sKA0}, s{shead}, 16
          s_lshl_b32 s{st0}, s{sqt}, 10
          s_add_u32 s{st0}, s{st0}, s{sKA0}
          s_xor_b32 s{st1}, s{st0}, 1024
          buffer_load_dwordx4 {vr(QA[0],4)}, v{vKA}, {D}, s{st0} offen
          buffer_load_dwordx4 {vr(QA[1],4)}, v{vKA}, {D}, s{st1} offen
          s_add_u32 s{sKA0}, s{sKA0}, {32*65536}
          buffer_load_dwordx4 {vr(KM,4)}, v{vKA}, {D}, s{sKA0} offen
          s_lshl_b32 s{sKB0}, s{shead}, 14
          s_add_u32 s{sKB0}, s{sKB0}, {QKB}
          s_lshl_b32 s{st0}, s{sqt}, 8
          s_add_u32 s{st0}, s{st0}, s{sKB0}
          s_xor_b32 s{st1}, s{st0}, 256
          s_mov_b32 exec_hi, 0
          buffer_load_dwordx2 {vr(QB[0],2)}, v{vKB}, {D}, s{st0} offen
          buffer_load_dwordx2 {vr(QB[1],2)}, v{vKB}, {D}, s{st1} offen
          s_mov_b64 exec, -1
          s_add_u32 s{sKB0}, s{sKB0}, {32*16384}
          buffer_load_dwordx2 {vr(KM+4,2)}, v{vKB}, {D}, s{sKB0} offen
          s_mul_i32 s{sV0}, s{shead}, 81920
          s_add_u32 s{sV0}, s{sV0}, {VF}""")
    def loadK(i, off):
        k(f"""buffer_load_dwordx4 {vr(KA[i],4)}, v{vKA}, {D}, s{sKA} offen offset:{off*1024}
              buffer_load_dwordx2 {vr(KB[i],2)}, v{vKB}, {D}, s{sKB} offen offset:{off*256}""")
    def loadV(i, off):
        k(f"""s_mov_b64 exec, s[{smask}:{smask+1}]
              buffer_load_dwordx4 {vr(V[i][0],4)}, v{vV}, {D}, s{sV} offen offset:{off*1280}
              buffer_load_dwordx4 {vr(V[i][1],4)}, v{vV}, {D}, s{sV} offen offset:{off*1280+640}
              s_mov_b64 exec, -1""")
    def first_loads():
        k(f"""s_lshl_b32 s{st0}, s{skh}, 15
              s_add_u32 s{sKA}, s{sKA0}, s{st0}
              s_lshl_b32 s{st0}, s{skh}, 13
              s_add_u32 s{sKB}, s{sKB0}, s{st0}
              s_mul_i32 s{st0}, s{skh}, {32*1280}
              s_add_u32 s{sV}, s{sV0}, s{st0}""")
        loadK(0, 0); loadK(1, 1); loadV(0, 0)
    def qk16(dst, ka, q, c): return f"v_mfma_f32_32x32x16_bf16 {vr(dst,16)}, {vr(ka,4)}, {vr(QA[q],4)}, {c}"
    def qk8(dst, kb, q): return f"v_mfma_f32_32x32x8bf16_1k {vr(dst,16)}, {vr(kb,2)}, {vr(QB[q],2)}, {vr(dst,16)}"
    def pv(q, v, p, h): return f"v_mfma_f32_32x32x16_bf16 {vr(O[q],16)}, {vr(V[v][h],4)}, {vr(P[p]+4*h,4)}, {vr(O[q],16)}"
    def maxtree(q, first):
        s = S[q]
        if first:
            k(f"v_max3_f32 v{mx[q]}, v{s}, v{s+1}, v{s+2}")
            for r in range(3, 15, 2): k(f"v_max3_f32 v{mx[q]}, v{mx[q]}, v{s+r}, v{s+r+1}")
            k(f"v_max_f32 v{mx[q]}, v{mx[q]}, v{s+15}")
        else:
            for r in range(0, 16, 2): k(f"v_max3_f32 v{mx[q]}, v{mx[q]}, v{s+r}, v{s+r+1}")
    first_loads()
    k.stamp(1)
    k("s_waitcnt vmcnt(6)")
    k(qk16(S[0], KM, 0, "0")); k(qk16(S[1], KM, 1, "0")); k(qk8(S[0], KM+4, 0)); k(qk8(S[1], KM+4, 1))
    for q in range(2):
        for r in range(16): k(f"v_mov_b32 v{O[q]+r}, 0")
    maxtree(0, True); maxtree(1, True)
    k("L_k2_setm:")
    k(f"""v_mov_b32 v{t[0]}, v{mx[0]}
          v_mov_b32 v{t[1]}, v{mx[1]}
          s_nop 0
          v_permlane32_swap_b32 v{mx[0]}, v{t[0]}
          v_permlane32_swap_b32 v{mx[1]}, v{t[1]}
          s_nop 0
          v_max_f32 v{mx[0]}, v{mx[0]}, v{t[0]}
          v_max_f32 v{mx[1]}, v{mx[1]}, v{t[1]}""")
    for q in range(2):
        for r in range(16): k(f"v_sub_f32 v{NM[q]+r}, 0, v{mx[q]}")
    for r in range(8): k(f"v_mov_b32 v{P[1]+r}, 0")
    k(f"""s_mov_b32 s{scnt}, 16
          s_waitcnt vmcnt(4)""")
    k(qk16(S[0], KA[0], 0, vr(NM[0],16))); k(qk8(S[0], KB[0], 0))
    k("s_nop 7\ns_nop 3")
    k.stamp(2)
    k(".p2align 6\nL_k2_loop:")
    def phase(sb, mf, after):
        s = S[sb]; p = P[sb]
        for g in range(4):
            k(mf[g])
            if g in after: after[g]()
            for i in range(4): k(f"v_exp_f32 v{s+4*g+i}, v{s+4*g+i}")
            for i in range(2): k(f"v_cvt_pk_bf16_f32 v{p+2*g+i}, v{s+4*g+2*i}, v{s+4*g+2*i+1}")
    phase(0, [qk16(S[1], KA[0], 1, vr(NM[1],16)), qk8(S[1], KB[0], 1), pv(1, 1, 1, 0), pv(1, 1, 1, 1)],
          {1: lambda: loadK(0, 2), 3: lambda: loadV(1, 1)})
    k("s_waitcnt vmcnt(4)")
    phase(1, [qk16(S[0], KA[1], 0, vr(NM[0],16)), qk8(S[0], KB[1], 0), pv(0, 0, 0, 0), pv(0, 0, 0, 1)], {})
    phase(0, [qk16(S[1], KA[1], 1, vr(NM[1],16)), qk8(S[1], KB[1], 1), pv(1, 0, 1, 0), pv(1, 0, 1, 1)],
          {1: lambda: loadK(1, 3), 3: lambda: loadV(0, 2)})
    k("s_waitcnt vmcnt(4)")
    def adv():
        k(f"""s_add_u32 s{sKA}, s{sKA}, 2048
              s_add_u32 s{sKB}, s{sKB}, 512
              s_add_u32 s{sV}, s{sV}, 2560
              s_sub_u32 s{scnt}, s{scnt}, 1
              s_cmp_lg_u32 s{scnt}, 0""")
    phase(1, [qk16(S[0], KA[0], 0, vr(NM[0],16)), qk8(S[0], KB[0], 0), pv(0, 1, 0, 0), pv(0, 1, 0, 1)], {1: adv})
    k("s_cbranch_scc1 L_k2_loop")
    k("s_nop 0")
    k.stamp(3)
    k(pv(1, 1, 1, 0)); k(pv(1, 1, 1, 1))
    k(f"""s_mul_i32 s{st0}, s{sw}, 3072
          v_add_u32 v{t[2]}, s{st0}, v{vKA}
          s_xor_b32 s{st1}, s{sw}, 4
          s_mul_i32 s{st1}, s{st1}, 3072
          v_add_u32 v{t[3]}, s{st1}, v{vKA}
          v_add_f32 v{t[0]}, |v{O[0]}|, |v{O[0]+1}|""")
    for r in range(2, 12): k(f"v_add_f32 v{t[0]}, v{t[0]}, |v{O[0]+r}|")
    for i in range(3): k(f"ds_write_b128 v{t[2]}, {vr(O[1]+4*i,4)} offset:{XCH+i*1024}")
    for r in range(12): k(f"v_add_f32 v{t[0]}, v{t[0]}, |v{O[1]+r}|")
    k(f"""s_mov_b32 s{st0}, {f32(2.0**59)}
          v_cmp_ngt_f32 vcc, s{st0}, v{t[0]}
          s_lshl_b32 s{st1}, s{sw}, 2
          v_mov_b32 v{t[1]}, s{st1}
          s_or_b32 s{st0}, vcc_lo, vcc_hi
          v_mov_b32 v{t[0]}, s{st0}
          ds_write_b32 v{t[1]}, v{t[0]} offset:{FLG}
          v_and_b32 v{t[1]}, 28, v{vl}
          s_waitcnt lgkmcnt(0)
          s_barrier
          ds_read_b32 v{t[0]}, v{t[1]} offset:{FLG}""")
    k.stamp(4)
    R = S[0]
    for i in range(3): k(f"ds_read_b128 {vr(R+4*i,4)}, v{t[3]} offset:{XCH+i*1024}")
    k(f"""s_mul_i32 s{st0}, s{sqt}, 40960
          s_add_u32 s{st0}, s{st0}, {OF}
          s_lshl_b32 s{st1}, s{shead}, 9
          s_add_u32 s{st1}, s{st1}, s{st0}
          v_bfe_u32 v{t[1]}, v{vl}, 4, 1
          v_mul_u32_u24 v{t[1]}, 20480, v{t[1]}
          v_and_b32 v{t[2]}, 15, v{vl}
          v_lshl_add_u32 v{t[1]}, v{t[2]}, 4, v{t[1]}
          v_lshrrev_b32 v{t[2]}, 5, v{vl}
          v_lshl_add_u32 v{t[2]}, v{t[2]}, 8, v{t[1]}
          s_lshr_b32 s3, s{shead}, 1
          s_lshl_b32 s3, s3, 8
          s_add_u32 s{st0}, s{st0}, s3
          s_and_b32 s3, s{shead}, 1
          s_lshl_b32 s3, s3, 3
          s_add_u32 s{st0}, s{st0}, s3
          s_add_u32 s{st0}, s{st0}, {64*256}
          s_waitcnt lgkmcnt(3)
          v_cmp_ne_u32 vcc, 0, v{t[0]}
          s_cmp_lg_u32 s{ssec}, 0
          s_cbranch_scc1 L_k2_fin
          s_cbranch_vccnz L_k2_fb
          L_k2_fin:
          s_waitcnt vmcnt(0) lgkmcnt(0)
          v_add_f32 v{O[0]+8}, v{O[0]+8}, v{R+8}""")
    for r in (0, 2, 4, 6, 10): k(pk("v_pk_add_f32", O[0]+r, (O[0]+r,'p'), (R+r,'p')))
    k(f"""v_rcp_f32 v{t[0]}, v{O[0]+8}
          v_add_f32 v{O[0]+9}, v{O[0]+9}, v{R+9}
          s_nop 0
          v_mov_b32 v{R}, v{t[0]}
          v_mov_b32 v{R+1}, v{t[0]}
          s_nop 1
          v_permlane32_swap_b32 v{R}, v{R+1}
          s_nop 1""")
    for r in range(0, 12, 2): k(pk("v_pk_mul_f32", O[0]+r, (O[0]+r,'p'), (R,'h')))
    for i in range(6): k(f"v_cvt_pk_bf16_f32 v{O[0]+i}, v{O[0]+2*i}, v{O[0]+2*i+1}")
    k(f"""buffer_store_dwordx4 {vr(O[0],4)}, v{t[2]}, {D}, s{st1} offen
          s_mov_b32 exec_hi, 0
          buffer_store_dwordx2 {vr(O[0]+4,2)}, v{t[1]}, {D}, s{st0} offen""")
    k.end()
    k(f"{Lend}:\ns_endpgm")
    k(f"""L_k2_fb:
          s_waitcnt vmcnt(0) lgkmcnt(0)
          s_barrier
          s_mov_b32 s{ssec}, 1
          s_mov_b32 s{sKA}, s{sKA0}
          s_mov_b32 s{sKB}, s{sKB0}
          s_mov_b32 s{scnt}, 64
          L_k2_fbl:""")
    loadK(0, 0)
    k("s_waitcnt vmcnt(0)")
    k(qk16(S[0], KA[0], 0, "0")); k(qk16(S[1], KA[0], 1, "0")); k(qk8(S[0], KB[0], 0)); k(qk8(S[1], KB[0], 1))
    k(f"""s_add_u32 s{sKA}, s{sKA}, 1024
          s_add_u32 s{sKB}, s{sKB}, 256
          s_sub_u32 s{scnt}, s{scnt}, 1
          s_cmp_lg_u32 s{scnt}, 0
          s_nop 7
          s_nop 3""")
    maxtree(0, False); maxtree(1, False)
    k("s_cbranch_scc1 L_k2_fbl")
    first_loads()
    for q in range(2):
        for r in range(16): k(f"v_mov_b32 v{O[q]+r}, 0")
    k("s_branch L_k2_setm")
    return k
```

```python
from common import *
def gen_k35(down):
    NS = 48 if down else 20
    NST = NS // 4
    NSLOT = min(NST, 7)
    ABASE, ASTRIDE, WBASE = (HHF, 49152, WDF) if down else (OF, 20480, WOF)
    nm = "k5_down_kernel" if down else "k3_oproj_kernel"
    k = Kern(nm, 256, 512, NSLOT*20480)
    sws = k.s(2); sio = k.s(2); sw, smt, sct, st0, st1 = [k.s() for _ in range(5)]
    Lend = k.lab("end"); Lc = k.lab("comp")
    vl = k.v(); v16 = k.v()
    k(f"""s_load_dwordx2 s[{sws}:{sws+1}], s[0:1], 72
          s_load_dwordx2 s[{sio}:{sio+1}], s[0:1], {56 if down else 0}
          s_cmp_ge_u32 s2, 256
          s_cbranch_scc1 {Lend}
          s_and_b32 s{smt}, s2, 7
          s_lshl_b32 s{smt}, s{smt}, 2
          s_bfe_u32 s{st0}, s2, 0x20003
          s_add_u32 s{smt}, s{smt}, s{st0}
          s_lshr_b32 s{sct}, s2, 5""")
    wave_id(k, sw, vl)
    k(f"""v_lshlrev_b32 v{v16}, 4, v{vl}
          s_waitcnt lgkmcnt(0)""")
    dws = k.srd(sws, WS_SIZE); D = f"s[{dws}:{dws+3}]"
    k(f"""s_cmp_lt_u32 s{sw}, 4
          s_cbranch_scc1 {Lc}""")
    m = k.vmark()
    v16b = k.v(); so, sm0 = k.s(), k.s()
    k(f"""s_sub_u32 s{st0}, s{sw}, 4
          s_mul_i32 s{sm0}, s{st0}, 5120
          s_mul_i32 s{so}, s{sct}, {NS*5120}
          s_add_u32 s{so}, s{so}, s{sm0}
          s_add_u32 s{so}, s{so}, {WBASE}
          v_add_u32 v{v16b}, 4096, v{v16}""")
    def issue(stage):
        slot = stage % NSLOT
        k(f"""s_add_u32 m0, s{sm0}, {slot*20480}
              s_nop 0""")
        for p in range(4):
            k(f"buffer_load_dwordx4 v{v16}, {D}, s{so} offen offset:{p*1024} lds")
        k(f"""s_add_u32 m0, s{sm0}, {slot*20480+4096}
              s_nop 0
              buffer_load_dwordx4 v{v16b}, {D}, s{so} offen lds
              s_add_u32 s{so}, s{so}, 20480""")
    for s in range(NSLOT): issue(s)
    k.stamp(1)
    issued = NSLOT-1
    for s in range(NST):
        k(f"""s_waitcnt vmcnt({5*(issued-s)})
              s_barrier""")
        if s >= 1 and s-1+NSLOT < NST:
            issue(s-1+NSLOT); issued = s-1+NSLOT
    k.end()
    k.vrelease(m)
    k(f"{Lc}:")
    sa = k.s(); srow = k.s()
    acc = [k.v(4, 4) for _ in range(5)]
    W = [[k.v(4, 4) for _ in range(5)] for _ in range(2)]
    res = k.v(12, 4)
    t = [k.v() for _ in range(6)]
    vrm, vhf = k.v(), k.v()
    AD = min(NS, 40)
    A = [k.a(4, 4) for _ in range(AD)]
    A = [A[i % AD] for i in range(NS)]
    k(f"""s_lshl_b32 s{srow}, s{smt}, 2
          s_add_u32 s{srow}, s{srow}, s{sw}
          s_mul_i32 s{sa}, s{srow}, {ASTRIDE}
          s_add_u32 s{sa}, s{sa}, {ABASE}""")
    def aload(s):
        k(f"buffer_load_dwordx4 {ar(A[s],4)}, v{v16}, {D}, s{sa} offen offset:{(s&3)*1024}")
        if (s & 3) == 3: k(f"s_add_u32 s{sa}, s{sa}, 4096")
    for s in range(8): aload(s)
    dio = k.srd(sio, 2048*1280); IO = f"s[{dio}:{dio+3}]"
    k(f"""v_and_b32 v{t[0]}, 15, v{vl}
          v_lshrrev_b32 v{t[1]}, 4, v{vl}
          s_lshl_b32 s{st0}, s{srow}, 4
          v_add_u32 v{t[2]}, s{st0}, v{t[0]}
          v_mul_u32_u24 v{t[3]}, 1280, v{t[2]}
          s_mul_i32 s{st0}, s{sct}, 160
          v_add_u32 v{t[3]}, s{st0}, v{t[3]}
          v_lshl_add_u32 v{vrm}, v{t[1]}, 4, v{t[3]}
          v_lshl_add_u32 v{t[3]}, v{t[1]}, 3, v{t[3]}
          s_lshr_b32 s{st0}, s{srow}, 1
          s_mul_i32 s{st0}, s{st0}, 40960
          s_and_b32 s{st1}, s{srow}, 1
          s_lshl_b32 s{st1}, s{st1}, 8
          s_add_u32 s{st0}, s{st0}, s{st1}
          s_mul_i32 s{st1}, s{sct}, 5120
          s_add_u32 s{st0}, s{st0}, s{st1}
          s_add_u32 s{st0}, s{st0}, {HF}
          v_lshl_add_u32 v{t[0]}, v{t[0]}, 4, s{st0}
          v_lshl_add_u32 v{vhf}, v{t[1]}, 9, v{t[0]}
          v_lshrrev_b32 v{t[4]}, 1, v{t[1]}
          v_lshl_add_u32 v{t[0]}, v{t[4]}, 9, v{t[0]}
          v_and_b32 v{t[1]}, 1, v{t[1]}
          v_lshl_add_u32 v{t[0]}, v{t[1]}, 3, v{t[0]}
          v_add_u32 v{t[0]}, 4096, v{t[0]}""")
    vrm2, vhf2, vR = t[3], t[0], t[2]
    for s in range(8, AD): aload(s)
    if down:
        k(f"""buffer_load_dwordx4 {vr(res,4)}, v{vhf}, {D}, 0 offen
              buffer_load_dwordx4 {vr(res+4,4)}, v{vhf}, {D}, 0 offen offset:2048
              buffer_load_dwordx2 {vr(res+8,2)}, v{vhf2}, {D}, 0 offen""")
    else:
        k(f"""buffer_load_dwordx4 {vr(res,4)}, v{vrm}, {IO}, 0 offen
              buffer_load_dwordx4 {vr(res+4,4)}, v{vrm}, {IO}, 0 offen offset:64
              buffer_load_dwordx2 {vr(res+8,2)}, v{vrm2}, {IO}, 0 offen offset:128""")
    vb = [k.v() for _ in range((NSLOT*20480 + 61439)//61440)]
    for i, r in enumerate(vb):
        k(f"v_add_u32 v{r}, {i*61440}, v{v16}")
    def wread(s):
        off = ((s//4) % NSLOT)*20480 + (s & 3)*5120
        for j in range(5):
            k(f"ds_read_b128 {vr(W[s&1][j],4)}, v{vb[off//61440]} offset:{off%61440 + j*1024}")
    k.stamp(1); k("s_barrier"); k.stamp(2)
    wread(0)
    for s in range(NS):
        last_in_stage = (s & 3) == 3
        vm = (AD-1-s) + 3 + min(s, NS-AD) if s < AD else NS-1-s
        if s+1 < NS and not last_in_stage:
            wread(s+1)
            k(f"s_waitcnt vmcnt({vm}) lgkmcnt(5)")
        else:
            k(f"s_waitcnt vmcnt({vm}) lgkmcnt(0)")
            if s+1 < NS:
                k("s_barrier")
                wread(s+1)
        for j in range(5):
            c = "0" if s == 0 else vr(acc[j],4)
            k(f"v_mfma_f32_16x16x32_bf16 {vr(acc[j],4)}, {vr(W[s&1][j],4)}, {ar(A[s],4)}, {c}")
        if s + AD < NS: aload(s + AD)
    U = W[0][0]
    k.stamp(3)
    k("s_waitcnt vmcnt(0)")
    for i in range(10):
        k(f"""v_lshlrev_b32 v{U+2*i}, 16, v{res+i}
              v_and_b32 v{U+2*i+1}, 0xffff0000, v{res+i}""")
    for i in range(10):
        k(pk("v_pk_add_f32", U+2*i, (U+2*i,'p'), (acc[0]+2*i,'p')))
    for i in range(10):
        k(f"v_cvt_pk_bf16_f32 v{res+i}, v{U+2*i}, v{U+2*i+1}")
    if down:
        k(f"""buffer_store_dwordx4 {vr(res,4)}, v{vrm}, {IO}, 0 offen
              buffer_store_dwordx4 {vr(res+4,4)}, v{vrm}, {IO}, 0 offen offset:64
              buffer_store_dwordx2 {vr(res+8,2)}, v{vrm2}, {IO}, 0 offen offset:128""")
    else:
        k(f"""buffer_store_dwordx4 {vr(res,4)}, v{vhf}, {D}, 0 offen
              buffer_store_dwordx4 {vr(res+4,4)}, v{vhf}, {D}, 0 offen offset:2048
              buffer_store_dwordx2 {vr(res+8,2)}, v{vhf2}, {D}, 0 offen
              s_mov_b32 s{st1}, {hex(ONES)}
              v_mov_b32 v{t[4]}, 0
              v_mov_b32 v{t[5]}, 0""")
        for i in range(10):
            k(f"""v_dot2c_f32_bf16 v{t[4]}, s{st1}, v{res+i}
                  v_dot2c_f32_bf16 v{t[5]}, v{res+i}, v{res+i}""")
        k(f"""s_lshl_b32 s{st0}, s{sct}, 3
              s_add_u32 s{st0}, s{st0}, {STATS}
              v_lshlrev_b32 v{vR}, 6, v{vR}
              v_lshrrev_b32 v{t[1]}, 5, v{vl}
              v_permlane32_swap_b32 v{t[4]}, v{t[5]}
              v_lshl_add_u32 v{vR}, v{t[1]}, 2, v{vR}
              s_nop 0
              v_add_f32 v{t[4]}, v{t[4]}, v{t[5]}
              v_mov_b32 v{t[5]}, v{t[4]}
              s_nop 1
              v_permlane16_swap_b32 v{t[4]}, v{t[5]}
              s_nop 1
              v_add_f32 v{t[4]}, v{t[4]}, v{t[5]}
              buffer_store_dword v{t[4]}, v{vR}, {D}, s{st0} offen""")
    k.end()
    k(f"{Lend}:\ns_endpgm")
    return k
```

```python
from common import *
def gen_k4(NSLOT=7):
    NST = 20
    CS = NSLOT*20480
    k = Kern("k4_gateup_kernel", 256, 512, CS + 1024)
    sws = k.s(2); sw, smt, snt, st0, st1 = [k.s() for _ in range(5)]
    Lend = k.lab("end"); Lc = k.lab("comp")
    vl = k.v(); v16 = k.v()
    k(f"""s_load_dwordx2 s[{sws}:{sws+1}], s[0:1], 72
          s_cmp_ge_u32 s2, 256
          s_cbranch_scc1 {Lend}
          s_and_b32 s{smt}, s2, 1
          s_lshl_b32 s{smt}, s{smt}, 3
          s_bfe_u32 s{st0}, s2, 0x30003
          s_add_u32 s{smt}, s{smt}, s{st0}
          s_bfe_u32 s{snt}, s2, 0x20001
          s_lshl_b32 s{snt}, s{snt}, 2
          s_lshr_b32 s{st0}, s2, 6
          s_add_u32 s{snt}, s{snt}, s{st0}""")
    wave_id(k, sw, vl)
    k(f"""v_lshlrev_b32 v{v16}, 4, v{vl}
          s_waitcnt lgkmcnt(0)""")
    dws = k.srd(sws, WS_SIZE); D = f"s[{dws}:{dws+3}]"
    k(f"""s_cmp_lt_u32 s{sw}, 4
          s_cbranch_scc1 {Lc}""")
    m = k.vmark()
    soA, soW, smA, smW, slw = [k.s() for _ in range(5)]
    c = k.v(8); va = k.v()
    k(f"""s_sub_u32 s{slw}, s{sw}, 4
          s_lshl_b32 s{st0}, s{smt}, 2
          s_add_u32 s{st0}, s{st0}, s{slw}
          s_mul_i32 s{soA}, s{st0}, 40960
          s_add_u32 s{soA}, s{soA}, {HF}
          s_lshl_b32 s{smA}, s{slw}, 11
          s_mul_i32 s{smW}, s{slw}, 3072
          s_mul_i32 s{soW}, s{snt}, 245760
          s_add_u32 s{soW}, s{soW}, s{smW}
          s_add_u32 s{soW}, s{soW}, {WGUF}
          s_add_u32 s{smW}, s{smW}, 8192""")
    def issue(stage):
        slot = stage % NSLOT
        k(f"""s_add_u32 m0, s{smA}, {slot*20480}
              s_nop 0""")
        for p in range(2):
            k(f"buffer_load_dwordx4 v{v16}, {D}, s{soA} offen offset:{p*1024} lds")
        k(f"""s_add_u32 m0, s{smW}, {slot*20480}
              s_add_u32 s{soA}, s{soA}, 2048""")
        for p in range(3):
            k(f"buffer_load_dwordx4 v{v16}, {D}, s{soW} offen offset:{p*1024} lds")
        k(f"s_add_u32 s{soW}, s{soW}, 12288")
    for s in range(NSLOT): issue(s)
    k.stamp(1)
    k(f"""s_lshl_b32 s{st0}, s{slw}, 8
          v_lshl_add_u32 v{va}, v{vl}, 2, s{st0}
          s_mul_i32 s{st0}, s{snt}, 768
          s_add_u32 s{st0}, s{st0}, {CSG}""")
    for p in range(8):
        k(f"buffer_load_dword v{c+p}, v{va}, {D}, s{st0} offen")
        if p < 7: k(f"s_add_u32 s{st0}, s{st0}, {96*128}")
    issued = NSLOT-1
    for s in range(NST):
        extra = 8 if s < NSLOT else 0
        k(f"""s_waitcnt vmcnt({5*(issued-s) + extra})
              s_barrier""")
        if s >= 1 and s-1+NSLOT < NST:
            issue(s-1+NSLOT); issued = s-1+NSLOT
        if s == NSLOT:
            for p in range(1, 8): k(f"v_add_f32 v{c}, v{c}, v{c+p}")
            k(f"""v_add_u32 v{va}, {CS}, v{va}
                  ds_write_b32 v{va}, v{c}
                  s_waitcnt lgkmcnt(0)""")
    k.end()
    k.vrelease(m)
    k(f"{Lc}:")
    swm, swn, sslot, scnt = [k.s() for _ in range(4)]
    acc = [[k.v(16, 4) for f in range(3)] for tf in range(2)]
    X = [[k.v(4, 4) for tf in range(2)] for _ in range(2)]
    W = [[k.v(4, 4) for f in range(3)] for _ in range(2)]
    pad = k.v(8, 4)
    ST = [k.v(8, 4) for tf in range(2)]
    ns = [k.v(2) for tf in range(2)]
    t = [k.v() for _ in range(4)]
    aX, aW, bX, bW, vo = [k.v() for _ in range(5)]
    k(f"""s_lshr_b32 s{swm}, s{sw}, 1
          s_and_b32 s{swn}, s{sw}, 1
          v_and_b32 v{t[0]}, 31, v{vl}
          v_lshrrev_b32 v{t[1]}, 5, v{vl}
          v_lshlrev_b32 v{t[2]}, 6, v{t[0]}
          v_lshl_add_u32 v{t[2]}, v{t[1]}, 5, v{t[2]}
          s_lshl_b32 s{st0}, s{smt}, 1
          s_add_u32 s{st0}, s{st0}, s{swm}
          s_lshl_b32 s{st1}, s{st0}, 12
          s_add_u32 s{st1}, s{st1}, {STATS}""")
    for tf in range(2):
        for h in range(2):
            k(f"buffer_load_dwordx4 {vr(ST[tf]+4*h,4)}, v{t[2]}, {D}, s{st1} offen offset:{tf*2048+h*16}")
    k(f"""s_mul_i32 s{st0}, s{st0}, {4*49152}
          s_mul_i32 s{st1}, s{snt}, {6*512}
          s_add_u32 s{st0}, s{st0}, s{st1}
          s_mul_i32 s{st1}, s{swn}, {3*512}
          s_add_u32 s{st0}, s{st0}, s{st1}
          s_add_u32 s{st0}, s{st0}, {HHF}
          v_lshrrev_b32 v{t[2]}, 4, v{t[0]}
          v_mul_u32_u24 v{t[2]}, 49152, v{t[2]}
          v_and_b32 v{t[0]}, 15, v{t[0]}
          v_lshl_add_u32 v{t[2]}, v{t[0]}, 4, v{t[2]}
          v_lshl_add_u32 v{t[2]}, v{t[1]}, 8, v{t[2]}
          v_add_u32 v{vo}, s{st0}, v{t[2]}
          s_lshl_b32 s{st0}, s{swm}, 12
          v_add_u32 v{bX}, s{st0}, v{v16}
          s_mul_i32 s{st0}, s{swn}, 3072
          s_add_u32 s{st0}, s{st0}, 8192
          v_add_u32 v{bW}, s{st0}, v{v16}
          v_mov_b32 v{aX}, v{bX}
          v_mov_b32 v{aW}, v{bW}""")
    for tf in range(2):
        for f in range(3):
            for r in range(16): k(f"v_mov_b32 v{acc[tf][f]+r}, 0")
    k("s_waitcnt vmcnt(0)")
    for tf in range(2):
        s_ = ST[tf]
        k(pk("v_pk_add_f32", s_, (s_,'p'), (s_+2,'p'))); k(pk("v_pk_add_f32", s_+4, (s_+4,'p'), (s_+6,'p')))
        k(pk("v_pk_add_f32", s_, (s_,'p'), (s_+4,'p')))
        k(f"""v_mov_b32 v{s_+2}, v{s_}
              v_mov_b32 v{s_+3}, v{s_+1}
              s_nop 0
              v_permlane32_swap_b32 v{s_}, v{s_+2}
              v_permlane32_swap_b32 v{s_+1}, v{s_+3}
              s_nop 1""")
        k(pk("v_pk_add_f32", s_, (s_,'p'), (s_+2,'p')))
        ln_scalars(k, s_, s_+1, s_+2, s_+3, ns[tf], ns[tf]+1)
        k(f"v_mul_f32 v{ns[tf]+1}, v{ns[tf]+1}, v{ns[tf]+1}")
    def reads(st, ks):
        for tf in range(2):
            k(f"ds_read_b128 {vr(X[st][tf],4)}, v{aX} offset:{tf*2048+ks*1024}")
        for f in range(3):
            k(f"ds_read_b128 {vr(W[st][f],4)}, v{aW} offset:{ks*6144+f*1024}")
    def mm(st):
        for f in range(3):
            for tf in range(2):
                k(f"v_mfma_f32_32x32x16_bf16 {vr(acc[tf][f],16)}, {vr(W[st][f],4)}, {vr(X[st][tf],4)}, {vr(acc[tf][f],16)}")
    Lloop = k.lab("loop"); Llast = k.lab("last")
    k(f"""s_mov_b32 s{sslot}, 0
          s_mov_b32 s{scnt}, {NST}""")
    k.stamp(1); k("s_barrier"); k.stamp(2)
    reads(0, 0)
    k(f"{Lloop}:")
    reads(1, 1)
    k(f"""s_add_u32 s{sslot}, s{sslot}, 20480
          s_cmp_eq_u32 s{sslot}, {NSLOT*20480}
          s_cselect_b32 s{sslot}, 0, s{sslot}
          s_sub_u32 s{scnt}, s{scnt}, 1
          s_waitcnt lgkmcnt(5)""")
    mm(0)
    k(f"""v_add_u32 v{aX}, s{sslot}, v{bX}
          v_add_u32 v{aW}, s{sslot}, v{bW}
          s_waitcnt lgkmcnt(0)
          s_cmp_eq_u32 s{scnt}, 0
          s_cbranch_scc1 {Llast}
          s_barrier""")
    reads(0, 0)
    mm(1)
    k(f"s_branch {Lloop}")
    k(f"{Llast}:")
    mm(1)
    k.stamp(3)
    csr = X[0][0]
    assert pad + 8 - csr == 48
    k(f"""s_mul_i32 s{st0}, s{swn}, 384
          s_add_u32 s{st0}, s{st0}, {CS}
          v_lshl_add_u32 v{t[0]}, v{t[1]}, 4, s{st0}
          s_nop 7""")
    for f in range(3):
        for g in range(4):
            k(f"ds_read_b128 {vr(csr+f*16+g*4,4)}, v{t[0]} offset:{f*128+g*32}")
    for f in range(3):
        k(f"s_waitcnt lgkmcnt({8-4*f})")
        for tf in range(2):
            a = acc[tf][f]
            for r in range(0, 16, 2):
                k(pk("v_pk_fma_f32", a+r, (csr+f*16+r,'p'), (ns[tf],'l'), (a+r,'p')))
            for r in (0, 2, 8, 10):
                k(pk("v_pk_mul_f32", a+r, (a+r,'p'), (ns[tf],'h')))
            for r in (0, 2, 8, 10):
                k(pk("v_pk_mul_f32", a+r, (a+r,'p'), (a+r+4,'p')))
            for i, r in enumerate((0, 2, 8, 10)):
                k(f"v_cvt_pk_bf16_f32 v{a+4+i}, v{a+r}, v{a+r+1}")
            if tf == 1: k(f"s_mov_b32 s{st1}, {2*49152}")
            k(f"buffer_store_dwordx4 {vr(a+4,4)}, v{vo}, {D}, {'0' if tf==0 else 's%d'%st1} offen offset:{f*512}")
    k.end()
    k(f"{Lend}:\ns_endpgm")
    return k
```

```python
import os
PROF = os.environ.get('PROF', '0') == '1'
PROFBASE = 32 << 20
class Kern:
    count = 0
    def __init__(self, name, grid, block, lds):
        self.name, self.grid, self.block, self.lds = name, grid, block, lds
        self.L = []
        self.nv = 1
        self.ns = 4
        self.na = 0
        self.maxv = 1
        self.maxs = 16
        self.uid = 0
        self.idx = Kern.count; Kern.count += 1
        if PROF:
            self.maxs = 100
            self("s_memrealtime s[92:93]\ns_memtime s[80:81]\nv_lshrrev_b32 v1, 6, v0\ns_nop 0\nv_readfirstlane_b32 s79, v1")
            for i in range(1, 6): self(f"s_mov_b32 s{80+2*i}, 0")
    def stamp(self, i):
        if PROF: self(f"s_memtime s[{80+2*i}:{81+2*i}]")
    def end(self):
        if PROF:
            self(f"""s_waitcnt vmcnt(0)
                     s_memtime s[90:91]
                     s_memrealtime s[94:95]
                     s_load_dwordx2 s[96:97], s[0:1], 72
                     s_mov_b32 s98, 0x4000000
                     s_mov_b32 s99, 0x20000
                     s_lshl_b32 s78, s2, 4
                     s_add_u32 s78, s78, s79
                     s_lshl_b32 s78, s78, 5
                     s_add_u32 s78, s78, {PROFBASE + self.idx*256*16*32}
                     s_mov_b64 exec, 1
                     s_waitcnt lgkmcnt(0)
                     v_mov_b32 v0, 0""")
            for i, r in enumerate([80, 82, 84, 86, 88, 90, 92, 94]): self(f"v_mov_b32 v{4+i}, s{r}")
            self("""buffer_store_dwordx4 v[4:7], v0, s[96:99], s78 offen
                    buffer_store_dwordx4 v[8:11], v0, s[96:99], s78 offen offset:16""")
        if PROF and os.environ.get('PROF2') == '1':
            self(f"""s_load_dwordx2 s[96:97], s[0:1], 64
                     s_waitcnt lgkmcnt(0)
                     s_add_u32 s96, s96, {(4-self.idx)*512}
                     s_addc_u32 s97, s97, 0
                     s_mul_i32 s78, s2, 9
                     s_and_b32 s78, s78, 0x38
                     s_or_b32 s78, s78, s79
                     s_cmp_eq_u32 s78, 0
                     s_cselect_b32 s98, 256, 0
                     s_not_b32 s92, s92
                     v_mov_b32 v1, s92
                     v_mov_b32 v2, s94
                     buffer_atomic_umax v1, v0, s[96:99], 0 offen offset:{self.idx*8}
                     buffer_atomic_umax v2, v0, s[96:99], 0 offen offset:{self.idx*8+4}""")
        self("s_endpgm")
    def __call__(self, s):
        for ln in s.strip("\n").split("\n"):
            ln = ln.strip()
            if ln:
                self.L.append(("" if ln.endswith(":") else "    ") + ln)
    def v(self, n=1, align=None):
        if align is None: align = 2 if n >= 2 else 1
        self.nv = (self.nv + align - 1) // align * align
        r = self.nv; self.nv += n
        self.maxv = max(self.maxv, self.nv)
        return r
    def vmark(self): return self.nv
    def vrelease(self, m): self.nv = m
    def a(self, n=1, align=None):
        if align is None: align = 2 if n >= 2 else 1
        self.na = (self.na + align - 1) // align * align
        r = self.na; self.na += n
        return r
    def s(self, n=1, align=None):
        if align is None: align = 4 if n >= 4 else (2 if n >= 2 else 1)
        self.ns = (self.ns + align - 1) // align * align
        r = self.ns; self.ns += n
        assert self.ns <= (78 if PROF else 100)
        self.maxs = max(self.maxs, self.ns)
        return r
    def lab(self, base):
        self.uid += 1
        return f"L_{self.name[:6]}_{base}_{self.uid}"
    def srd(self, ptr_s, nbytes):
        d = self.s(4)
        self(f"""s_mov_b32 s{d}, s{ptr_s}
                 s_mov_b32 s{d+1}, s{ptr_s+1}
                 s_mov_b32 s{d+2}, {hex(nbytes)}
                 s_mov_b32 s{d+3}, 0x20000""")
        return d
    def text(self):
        out = [f".globl {self.name}", ".p2align 8", f".type {self.name},@function", f"{self.name}:"]
        out += self.L
        return "\n".join(out) + "\n"
    def desc(self):
        acc = (self.maxv + 3) // 4 * 4
        assert acc <= 256, f"{self.name}: too many arch vgprs {self.maxv}"
        nfv = acc + self.na if self.na else self.maxv
        assert nfv <= 512
        return f""".p2align 6
.amdhsa_kernel {self.name}
  .amdhsa_next_free_vgpr {nfv}
  .amdhsa_next_free_sgpr {self.maxs}
  .amdhsa_accum_offset {acc}
  .amdhsa_group_segment_fixed_size 0
  .amdhsa_kernarg_size 80
  .amdhsa_user_sgpr_count 2
  .amdhsa_user_sgpr_kernarg_segment_ptr 1
  .amdhsa_system_sgpr_workgroup_id_x 1
.end_amdhsa_kernel
"""

def vr(b, n): return f"v[{b}:{b+n-1}]" if n > 1 else f"v{b}"
def ar(b, n): return f"a[{b}:{b+n-1}]" if n > 1 else f"a{b}"
def sr(b, n): return f"s[{b}:{b+n-1}]" if n > 1 else f"s{b}"

def assemble_file(kernels, launches, header_comment=""):
    out = header_comment
    for k in launches:
        out += f"; @launch kernel={k.name} grid=({k.grid},1,1) block=({k.block},1,1) lds={k.lds}\n"
    out += '.amdgcn_target "amdgcn-amd-amdhsa--gfx950"\n.text\n'
    for k in kernels:
        out += k.text()
    out += '.section .rodata,"a"\n'
    for k in kernels:
        out += k.desc()
    return out
```

```python
import sys, math
from asmlib import *

QKA = 0
QKB = QKA + 64*65536
VF  = QKB + 64*16384
OF  = VF + 32*81920
WOF = OF + 128*20480
WGUF= WOF + 800*1024
WDF = WGUF + 3840*1024
HF  = WDF + 1920*1024
STATS = HF + 64*40960
HHF = STATS + 2048*64
WS_END0 = HHF + 128*49152
CSG = WS_END0
WS_END = CSG + 96*32*4*8
WS_SIZE = WS_END + 65536
ONES = 0x3f803f80
QSCALE = math.log2(math.e) / math.sqrt(20.0)
import struct
def f32(x): return "0x%08x" % struct.unpack("<I", struct.pack("<f", x))[0]

def wave_id(k, sw, vl):
    k(f"""v_lshrrev_b32 v{vl}, 6, v0
          s_nop 0
          v_readfirstlane_b32 s{sw}, v{vl}
          v_and_b32 v{vl}, 63, v0""")

def ln_scalars(k, s1, s2, t0, t1, negmean, rs):
    k(f"""v_mul_f32 v{s1}, {f32(1/640)}, v{s1}
          v_mul_f32 v{s2}, {f32(1/640)}, v{s2}
          v_fma_f32 v{s2}, -v{s1}, v{s1}, v{s2}
          v_max_f32 v{s2}, 0, v{s2}
          v_cvt_pk_bf16_f32 v{t0}, v{s1}, v{s2}
          v_and_b32 v{t1}, 0xffff0000, v{t0}
          v_lshlrev_b32 v{t0}, 16, v{t0}
          v_add_f32 v{t1}, {f32(1e-5)}, v{t1}
          v_sub_f32 v{negmean}, 0, v{t0}
          v_cvt_pk_bf16_f32 v{t1}, v{t1}, v{t1}
          v_and_b32 v{t1}, 0xffff0000, v{t1}
          v_sqrt_f32 v{t1}, v{t1}
          s_nop 0
          v_cvt_pk_bf16_f32 v{t1}, v{t1}, v{t1}
          v_and_b32 v{t1}, 0xffff0000, v{t1}
          v_rcp_f32 v{rs}, v{t1}
          s_nop 0""")

def xhalf_sum(k, x, t):
    k(f"""v_mov_b32 v{t}, v{x}
          s_nop 1
          v_permlane32_swap_b32 v{x}, v{t}
          s_nop 1
          v_add_f32 v{x}, v{x}, v{t}""")


def pk(op, d, a, b, c=None, sel=None, selhi=None):
    ops = [a, b] + ([c] if c else [])
    lo = [0 if m in "pl" else 1 for _, m in ops]
    hi = [1 if m in "ph" else 0 for _, m in ops]
    s = f"{op} v[{d}:{d+1}], " + ", ".join(f"v[{r}:{r+1}]" for r, _ in ops)
    s += " op_sel:[" + ",".join(map(str, lo)) + "] op_sel_hi:[" + ",".join(map(str, hi)) + "]"
    return s

def wo_col(U, j):
    if U < 64: return (U>>1)*20 + (j>>2)*8 + (U&1)*4 + (j&3)
    return (2*(U-64) + (j>>2))*20 + 16 + (j&3)
def wd_k(s, sg): return 32*s + (sg>>4)*16 + ((sg>>2)&1)*8 + ((sg>>3)&1)*4 + (sg&3)
def gu_k(s, hi, j): return 16*s + 8*hi + j
def w_feat(j5, i):
    if j5 < 4: return 32*(j5>>1) + (i>>2)*8 + (j5&1)*4 + (i&3)
    return 64 + i

def loader_loop(k, issue, NST, NSLOT, LA, per, extra=None, hook=None):
    LA = min(LA, NSLOT, NST)
    assert LA <= NSLOT - 1 or NSLOT >= NST
    for s in range(LA): issue(s)
    k.stamp(1)
    issued = LA-1
    for s in range(NST):
        e = extra(s, issued) if extra else 0
        k(f"""s_waitcnt vmcnt({per*(issued-s) + e})
              s_barrier""")
        if issued+1 < NST:
            assert issued+1 < NSLOT or issued+1 - NSLOT <= s-1
            issued += 1; issue(issued)
        if hook: hook(s)
```

```python
from common import *
def gen_k1(NSLOT=4, LA=2, ROT=0):
    ST = NSLOT*32768
    k = Kern("k1_qkv_kernel", 256, 512, ST + 2048)
    sp = k.s(4); sws = k.s(2)
    smt, snt, sw, st0, st1 = k.s(), k.s(), k.s(), k.s(), k.s()
    Lend = k.lab("end"); Lload = k.lab("loader")
    vl = k.v()
    k(f"""s_load_dwordx4 s[{sp}:{sp+3}], s[0:1], 0
          s_load_dwordx2 s[{sws}:{sws+1}], s[0:1], 72
          s_cmp_ge_u32 s2, 256
          s_cbranch_scc1 {Lend}
          s_and_b32 s{smt}, s2, 3
          s_lshl_b32 s{smt}, s{smt}, 2
          s_bfe_u32 s{st0}, s2, 0x20003
          s_add_u32 s{smt}, s{smt}, s{st0}
          s_bfe_u32 s{snt}, s2, 0x10002
          s_lshl_b32 s{snt}, s{snt}, 3
          s_lshr_b32 s{st0}, s2, 5
          s_add_u32 s{snt}, s{snt}, s{st0}
          s_cmp_ge_u32 s{snt}, 15
          s_cbranch_scc1 {Lend}""")
    wave_id(k, sw, vl)
    k(f"""s_nop 3
          s_cmp_lt_u32 s{sw}, 4
          s_cbranch_scc1 L_k1_compute""")
    m = k.vmark()
    vA = [k.v() for _ in range(4)]; vB = [k.v() for _ in range(4)]
    t = [k.v() for _ in range(4)]
    slw, soA, soB, sm0, sstg = k.s(), k.s(), k.s(), k.s(), k.s()
    k(f"""s_sub_u32 s{slw}, s{sw}, 4
          s_lshl_b32 s{st0}, s{smt}, 7
          s_lshl_b32 s{st1}, s{slw}, 5
          s_add_u32 s{st0}, s{st0}, s{st1}
          v_bfe_u32 v{t[0]}, v{vl}, 2, 3
          v_add_u32 v{t[0]}, s{st0}, v{t[0]}
          s_movk_i32 s{st1}, 1280
          v_mul_lo_u32 v{t[0]}, v{t[0]}, s{st1}
          v_lshrrev_b32 v{t[1]}, 5, v{vl}
          v_lshl_add_u32 v{t[0]}, v{t[1]}, 6, v{t[0]}
          v_and_b32 v{t[1]}, 3, v{vl}""")
    for j in range(4):
        k(f"""v_xor_b32 v{t[2]}, {j}, v{t[1]}
              v_lshl_add_u32 v{vA[j]}, v{t[2]}, 4, v{t[0]}""")
        if j: k(f"v_add_u32 v{vA[j]}, {j*(10240-1024)}, v{vA[j]}")
    k(f"""s_lshl_b32 s{st0}, s{slw}, 4
          v_lshrrev_b32 v{t[0]}, 4, v{vl}
          v_lshlrev_b32 v{t[1]}, 2, v{t[0]}
          v_add_u32 v{t[0]}, s{st0}, v{t[0]}
          s_movk_i32 s{st1}, 3840
          v_mul_lo_u32 v{t[0]}, v{t[0]}, s{st1}
          v_and_b32 v{t[2]}, 15, v{vl}
          v_xor_b32 v{t[2]}, v{t[2]}, v{t[1]}
          v_lshl_add_u32 v{t[0]}, v{t[2]}, 4, v{t[0]}
          s_lshl_b32 s{st0}, s{snt}, 8
          v_add_u32 v{vB[0]}, s{st0}, v{t[0]}""")
    for j in range(1, 4):
        k(f"v_add_u32 v{vB[j]}, {j*(4*3840-1024)}, v{vB[0]}")
    if ROT:
        k(f"""s_bfe_u32 s{st0}, s2, 0x20003
              s_mul_i32 s{st0}, s{st0}, 5
              s_lshr_b32 s{st0}, s{st0}, 1
              s_lshr_b32 s{sstg}, s2, 5
              s_add_u32 s{sstg}, s{sstg}, s{st0}
              s_cmp_ge_u32 s{sstg}, 10
              s_cselect_b32 s{st0}, 10, 0
              s_sub_u32 s{sstg}, s{sstg}, s{st0}""")
    else: k(f"s_mov_b32 s{sstg}, 0")
    k(f"""s_lshl_b32 s{sm0}, s{slw}, 12
          s_waitcnt lgkmcnt(0)""")
    dx = k.srd(sp, 2048*1280); dw = k.srd(sp+2, 640*3840)
    def issue(stage):
        slot = stage % NSLOT
        k(f"""s_add_u32 m0, s{sm0}, {slot*32768}
              s_lshl_b32 s{soA}, s{sstg}, 7
              s_mul_i32 s{soB}, s{sstg}, {64*3840}""")
        for j in range(4):
            k(f"buffer_load_dwordx4 v{vA[j]}, s[{dx}:{dx+3}], s{soA} offen offset:{j*1024} lds")
        k(f"""s_add_u32 m0, s{sm0}, {slot*32768+16384}
              s_add_u32 s{sstg}, s{sstg}, 1
              s_cmp_eq_u32 s{sstg}, 10
              s_cselect_b32 s{sstg}, 0, s{sstg}""")
        for j in range(4):
            k(f"buffer_load_dwordx4 v{vB[j]}, s[{dw}:{dw+3}], s{soB} offen offset:{j*1024} lds")
    loader_loop(k, issue, 10, NSLOT, LA, 8)
    k.end()
    k.vrelease(m)
    k("L_k1_compute:")
    swm, swn, sslot, scnt, sscale, stile = k.s(), k.s(), k.s(), k.s(), k.s(), k.s()
    acc = [[k.v(16, 4) for nb in range(2)] for mb in range(2)]
    fx = [[k.v(4, 4) for mb in range(2)] for st in range(2)]
    fw = [[k.v(4, 4) for nb in range(2)] for st in range(2)]
    g1, g2, gc = k.v(4, 4), k.v(4, 4), k.v(4, 4)
    ones = k.v(2)
    aA = [[k.v() for p in range(2)] for mb in range(2)]; aB = [k.v() for _ in range(2)]
    bA = [[k.v() for p in range(2)] for mb in range(2)]; bB = [k.v() for _ in range(2)]
    al = aA[0]+aA[1]+aB; bl = bA[0]+bA[1]+bB
    vhi, vl31 = k.v(), k.v()
    t0_ = k.v(8); t = [t0_+i for i in range(8)]
    oaddr = k.v(16)
    k(f"""s_lshr_b32 s{swm}, s{sw}, 1
          s_and_b32 s{swn}, s{sw}, 1
          v_mov_b32 v{ones}, {hex(ONES)}
          v_mov_b32 v{ones+1}, {hex(ONES)}
          v_lshrrev_b32 v{vhi}, 5, v{vl}
          v_and_b32 v{vl31}, 31, v{vl}""")
    k(f"""s_lshl_b32 s{st0}, s{sw}, 12
          v_lshrrev_b32 v{t[1]}, 3, v{vl31}
          v_and_b32 v{t[0]}, 7, v{vl31}
          v_lshlrev_b32 v{t[0]}, 6, v{t[0]}
          v_lshl_add_u32 v{t[0]}, v{t[1]}, 10, v{t[0]}
          v_add_u32 v{t[0]}, s{st0}, v{t[0]}""")
    for p in range(2):
        k(f"""v_or_b32 v{t[2]}, {p*2}, v{vhi}
              v_xor_b32 v{t[2]}, v{t[2]}, v{t[1]}
              v_lshl_add_u32 v{bA[0][p]}, v{t[2]}, 4, v{t[0]}
              v_xor_b32 v{bA[1][p]}, 4096, v{bA[0][p]}""")
    k(f"""v_bfe_u32 v{t[0]}, v{vl}, 2, 2
          v_lshl_add_u32 v{t[1]}, v{vhi}, 3, v{t[0]}
          v_lshlrev_b32 v{t[1]}, 8, v{t[1]}
          v_and_b32 v{t[2]}, 1, v{vl}
          v_lshl_add_u32 v{t[1]}, v{t[2]}, 3, v{t[1]}
          v_add_u32 v{t[1]}, 16384, v{t[1]}
          v_bfe_u32 v{t[2]}, v{vl}, 4, 1
          v_lshlrev_b32 v{t[2]}, 1, v{t[2]}
          v_bfe_u32 v{t[3]}, v{vl}, 1, 1
          v_or_b32 v{t[2]}, v{t[2]}, v{t[3]}
          s_lshl_b32 s{st0}, s{swn}, 1
          s_add_u32 s{st0}, s{st0}, s{swm}
          s_lshl_b32 s{st1}, s{st0}, 2
          v_or_b32 v{t[2]}, s{st1}, v{t[2]}
          v_lshlrev_b32 v{t[0]}, 2, v{t[0]}
          v_xor_b32 v{t[2]}, v{t[2]}, v{t[0]}
          v_lshl_add_u32 v{bB[0]}, v{t[2]}, 4, v{t[1]}
          v_xor_b32 v{bB[1]}, 64, v{bB[0]}""")
    sfb = k.s()
    k(f"""s_mov_b32 s{sfb}, s{st0}
          s_lshl_b32 s{stile}, s{smt}, 2
          s_add_u32 s{stile}, s{stile}, s{sw}""")
    for a, b in zip(al, bl):
        k(f"v_mov_b32 v{a}, v{b}")
    for base, n in [(acc[0][0],16),(acc[0][1],16),(acc[1][0],16),(acc[1][1],16),(g1,4),(g2,4),(gc,4)]:
        for r in range(n): k(f"v_mov_b32 v{base+r}, 0")
    k("s_waitcnt lgkmcnt(0)")
    dws = k.srd(sws, WS_SIZE)
    LV = k.lab("vpath")
    k(f"""s_cmp_ge_u32 s{snt}, 10
          s_cbranch_scc1 {LV}""")

    def reads(st, ks):
        L = []
        for mb in range(2):
            L.append(f"ds_read_b128 {vr(fx[st][mb],4)}, v{aA[mb][ks&1]} offset:{(ks>>1)*512}")
            for q in range(2):
                L.append(f"ds_read_b64_tr_b16 {vr(fw[st][mb]+2*q,2)}, v{aB[mb]} offset:{ks*4096+q*1024}")
        return L

    def mainloop(isV):
        def small(st):
            x0, w0 = fx[st][0], fw[st][0]
            for h in range(2):
                k(f"v_mfma_f32_4x4x4_16b_bf16 {vr(g1,4)}, {vr(ones,2)}, {vr(x0+2*h,2)}, {vr(g1,4)}")
                k(f"v_mfma_f32_4x4x4_16b_bf16 {vr(g2,4)}, {vr(x0+2*h,2)}, {vr(x0+2*h,2)}, {vr(g2,4)}")
                k(f"v_mfma_f32_4x4x4_16b_bf16 {vr(gc,4)}, {vr(ones,2)}, {vr(w0+2*h,2)}, {vr(gc,4)}")
        def big(st, fill):
            n = 0
            for mb, nb in ((0,0),(0,1),(1,1),(1,0)):
                a, b = (fx[st][mb], fw[st][nb]) if isV else (fw[st][nb], fx[st][mb])
                k(f"v_mfma_f32_32x32x16_bf16 {vr(acc[mb][nb],16)}, {vr(a,4)}, {vr(b,4)}, {vr(acc[mb][nb],16)}")
                for d in fill[n]: k(d)
                n += 1
        Lloop = k.lab("loop"); Llast = k.lab("last")
        k(f"""s_mov_b32 s{sslot}, 0
              s_mov_b32 s{scnt}, 10""")
        k.stamp(1); k("s_barrier"); k.stamp(2)
        for d in reads(0, 0): k(d)
        k(f"{Lloop}:")
        for ks in range(3):
            k("s_waitcnt lgkmcnt(3)")
            small(ks&1)
            k("s_waitcnt lgkmcnt(0)")
            r = reads((ks+1)&1, ks+1)
            fill = [r[0:3], r[3:6], [], []]
            if ks == 1:
                fill[2] = [f"s_add_u32 s{sslot}, s{sslot}, 32768", f"s_cmp_eq_u32 s{sslot}, {NSLOT*32768}",
                           f"s_cselect_b32 s{sslot}, 0, s{sslot}", f"s_sub_u32 s{scnt}, s{scnt}, 1"]
            if ks == 2:
                ad = [f"v_add_u32 v{a}, s{sslot}, v{b}" for a, b in zip(al, bl)]
                fill[2] = ad[:3] + [f"s_cmp_eq_u32 s{scnt}, 0"]; fill[3] = ad[3:]
            big(ks&1, fill)
        k("s_waitcnt lgkmcnt(3)")
        small(1)
        k(f"""s_waitcnt lgkmcnt(0)
              s_cbranch_scc1 {Llast}""")
        r = reads(0, 0)
        big(1, [["s_barrier"] + r[0:3], r[3:6], [], []])
        k(f"s_branch {Lloop}")
        k(f"{Llast}:")
        big(1, [[], [], [], []])
        k.stamp(3)

    def stats_exchange(scale_q):
        s1, s2, nm, rs = t[0], t[1], t[4], t[5]
        assert nm % 2 == 0 and rs == nm+1
        k(f"""v_and_b32 v{t[2]}, 1, v{vl}
              v_cmp_eq_u32 vcc, 1, v{t[2]}
              v_and_b32 v{t[2]}, 2, v{vl}
              s_nop 3
              v_cndmask_b32 v{s2}, v{g2}, v{g2+1}, vcc
              v_cndmask_b32 v{t[3]}, v{g2+2}, v{g2+3}, vcc
              v_cmp_eq_u32 vcc, 2, v{t[2]}
              v_mov_b32 v{s1}, v{g1}
              v_mov_b32 v{t[6]}, v{gc}
              v_cndmask_b32 v{s2}, v{s2}, v{t[3]}, vcc
              v_permlane32_swap_b32 v{s1}, v{g1}
              v_mov_b32 v{t[3]}, v{s2}
              v_permlane32_swap_b32 v{t[6]}, v{gc}
              v_add_f32 v{s1}, v{s1}, v{g1}
              v_permlane32_swap_b32 v{s2}, v{t[3]}
              v_add_f32 v{t[6]}, v{t[6]}, v{gc}
              s_nop 0
              v_add_f32 v{s2}, v{s2}, v{t[3]}""")
        ln_scalars(k, s1, s2, t[2], t[3], nm, rs)
        if scale_q:
            k(f"v_mul_f32 v{rs}, s{sscale}, v{rs}")
        k(f"""s_lshl_b32 s{st0}, s{sw}, 7
              v_lshl_add_u32 v{t[2]}, v{vl31}, 2, s{st0}
              s_lshl_b32 s{st0}, s{sfb}, 7
              v_lshl_add_u32 v{t[3]}, v{vl31}, 2, s{st0}
              v_add_u32 v{t[2]}, {ST}, v{t[2]}
              v_add_u32 v{t[3]}, {ST}, v{t[3]}
              ds_write2_b32 v{t[2]}, v{nm}, v{rs} offset1:128
              ds_write_b32 v{t[3]}, v{t[6]} offset:1024
              s_waitcnt lgkmcnt(0)
              s_barrier""")
        k.stamp(4)

    k(f"""s_mov_b32 s{sscale}, 1.0
          s_cmp_lt_u32 s{snt}, 5
          s_cselect_b32 s{sscale}, {f32(QSCALE)}, s{sscale}
          s_mov_b32 s{st1}, 52429
          v_lshlrev_b32 v{t[6]}, 4, v{vl31}
          v_lshlrev_b32 v{t[7]}, 3, v{vl31}
          v_add_u32 v{t[7]}, {QKB}, v{t[7]}""")
    sA = [k.s(), k.s()]; sB = [k.s(), k.s()]
    k(f"""s_lshl_b32 s{sA[0]}, s{stile}, 10
          s_xor_b32 s{sA[1]}, s{sA[0]}, 1024
          s_lshl_b32 s{sB[0]}, s{stile}, 8
          s_xor_b32 s{sB[1]}, s{sB[0]}, 256""")
    for nb in range(2):
        k(f"""s_xor_b32 s{st0}, s{sfb}, {nb}
              s_lshl_b32 s{st0}, s{st0}, 3
              s_lshl_b32 s3, s{snt}, 5
              s_add_u32 s{st0}, s{st0}, s3
              v_add_u32 v{t[0]}, s{st0}, v{vhi}""")
        for g4 in range(4):
            o = oaddr + nb*4 + g4
            k(f"""v_add_u32 v{t[1]}, {2*g4}, v{t[0]}
                  v_mul_u32_u24 v{t[2]}, s{st1}, v{t[1]}
                  v_lshrrev_b32 v{t[2]}, 18, v{t[2]}
                  v_mad_i32_i24 v{t[1]}, v{t[2]}, -5, v{t[1]}
                  v_cmp_eq_u32 vcc, 4, v{t[1]}
                  v_lshl_add_u32 v{t[3]}, v{t[2]}, 16, v{t[6]}
                  v_lshl_add_u32 v{t[4]}, v{t[2]}, 14, v{t[7]}
                  v_lshrrev_b32 v{t[2]}, 1, v{t[1]}
                  v_and_b32 v{t[1]}, 1, v{t[1]}
                  v_lshl_add_u32 v{t[3]}, v{t[2]}, 9, v{t[3]}
                  v_lshl_add_u32 v{t[3]}, v{t[1]}, 3, v{t[3]}
                  v_add_u32 v{t[1]}, s{sA[0]}, v{t[3]}
                  v_add_u32 v{t[2]}, s{sB[0]}, v{t[4]}
                  v_cndmask_b32 v{o}, v{t[1]}, v{t[2]}, vcc
                  v_add_u32 v{t[1]}, s{sA[1]}, v{t[3]}
                  v_add_u32 v{t[2]}, s{sB[1]}, v{t[4]}
                  v_cndmask_b32 v{o+8}, v{t[1]}, v{t[2]}, vcc""")
    mainloop(False)
    stats_exchange(True)
    csr = fx[0][0]
    assert fw[1][1] + 4 - csr == 32
    st_pair = [g1, g1+2]
    k(f"""v_xor_b32 v{t[0]}, 128, v{t[2]}
          ds_read2_b32 v[{st_pair[1]}:{st_pair[1]+1}], v{t[0]} offset1:128
          s_lshl_b32 s{st0}, s{sfb}, 7
          v_lshl_add_u32 v{t[1]}, v{vhi}, 4, s{st0}
          v_add_u32 v{t[1]}, {ST+1024}, v{t[1]}
          v_xor_b32 v{t[3]}, 128, v{t[1]}
          v_mov_b32 v{st_pair[0]}, v{t[4]}
          v_mov_b32 v{st_pair[0]+1}, v{t[5]}""")
    for nb in range(2):
        for g4 in range(4):
            k(f"ds_read_b128 {vr(csr+nb*16+g4*4,4)}, v{t[1] if nb==0 else t[3]} offset:{g4*32}")
    for nb in range(2):
        k(f"s_waitcnt lgkmcnt({4 if nb==0 else 0})")
        for mb in range(2):
            a = acc[mb][nb]; sp_ = st_pair[mb]
            for r in range(0, 16, 2):
                k(pk("v_pk_fma_f32", a+r, (csr+nb*16+r,'p'), (sp_,'l'), (a+r,'p')))
            for r in range(0, 16, 2):
                k(pk("v_pk_mul_f32", a+r, (a+r,'p'), (sp_,'h')))
            for g4 in range(4):
                k(f"""v_cvt_pk_bf16_f32 v{a+4*g4}, v{a+4*g4}, v{a+4*g4+1}
                      v_cvt_pk_bf16_f32 v{a+4*g4+1}, v{a+4*g4+2}, v{a+4*g4+3}
                      buffer_store_dwordx2 v[{a+4*g4}:{a+4*g4+1}], v{oaddr+mb*8+nb*4+g4}, s[{dws}:{dws+3}], 0 offen""")
    k.end()
    k(f"""{LV}:
          s_mov_b32 s{st1}, 52429
          s_mul_i32 s{sA[0]}, s{stile}, 1280
          s_xor_b32 s{st0}, s{stile}, 1
          s_mul_i32 s{sA[1]}, s{st0}, 1280
          s_mov_b32 s{sB[0]}, 81920
          v_mul_u32_u24 v{t[5]}, 320, v{vhi}
          v_add_u32 v{t[5]}, {VF}, v{t[5]}""")
    for nb in range(2):
        k(f"""s_xor_b32 s{st0}, s{sfb}, {nb}
              s_lshl_b32 s{st0}, s{st0}, 5
              s_lshl_b32 s3, s{snt}, 7
              s_add_u32 s{st0}, s{st0}, s3
              s_sub_u32 s{st0}, s{st0}, 1280
              v_add_u32 v{t[1]}, s{st0}, v{vl31}
              v_mul_u32_u24 v{t[2]}, s{st1}, v{t[1]}
              v_lshrrev_b32 v{t[2]}, 20, v{t[2]}
              v_mul_u32_u24 v{t[3]}, 20, v{t[2]}
              v_sub_u32 v{t[1]}, v{t[1]}, v{t[3]}
              v_mad_u32_u24 v{t[2]}, v{t[2]}, s{sB[0]}, v{t[5]}
              v_lshl_add_u32 v{t[2]}, v{t[1]}, 4, v{t[2]}
              v_add_u32 v{oaddr+nb}, s{sA[0]}, v{t[2]}
              v_add_u32 v{oaddr+2+nb}, s{sA[1]}, v{t[2]}""")
    mainloop(True)
    stats_exchange(False)
    assert t[6] % 2 == 0
    k(f"""v_xor_b32 v{t[0]}, 128, v{t[3]}
          ds_read_b32 v{t[7]}, v{t[0]} offset:1024
          s_lshl_b32 s{st0}, s{sw}, 7
          v_lshl_add_u32 v{t[1]}, v{vhi}, 4, s{st0}
          v_add_u32 v{t[1]}, {ST}, v{t[1]}
          v_xor_b32 v{t[3]}, 128, v{t[1]}""")
    for mb in range(2):
        for h in range(2):
            for g4 in range(4):
                k(f"ds_read_b128 {vr(csr+h*16+g4*4,4)}, v{t[1] if mb==0 else t[3]} offset:{g4*32+h*512}")
        k(f"s_waitcnt lgkmcnt(0)")
        for nb in range(2):
            a = acc[mb][nb]
            for r in range(0, 16, 2):
                k(pk("v_pk_fma_f32", a+r, (csr+r,'p'), (t[6],'lh'[nb]), (a+r,'p')))
            for r in range(0, 16, 2):
                k(pk("v_pk_mul_f32", a+r, (a+r,'p'), (csr+16+r,'p')))
            for m_ in range(2):
                for i in range(4):
                    k(f"v_cvt_pk_bf16_f32 v{a+8*m_+i}, v{a+8*m_+2*i}, v{a+8*m_+2*i+1}")
                k(f"buffer_store_dwordx4 {vr(a+8*m_,4)}, v{oaddr+2*mb+nb}, s[{dws}:{dws+3}], 0 offen offset:{m_*640}")
    k.end()
    k(f"{Lend}:\ns_endpgm")
    return k
```

```python
from common import *
def gen_k35(down, LA=3, AD=12, ROT=0):
    NS = 48 if down else 20
    NST = NS // 4
    NSLOT = min(NST, LA+2)
    ABASE, ASTRIDE, WBASE = (HHF, 49152, WDF) if down else (OF, 20480, WOF)
    nm = "k5_down_kernel" if down else "k3_oproj_kernel"
    k = Kern(nm, 256, 512, NSLOT*20480)
    sws = k.s(2); sio = k.s(2); sw, smt, sct, st0, st1 = [k.s() for _ in range(5)]
    Lend = k.lab("end"); Lc = k.lab("comp")
    vl = k.v(); v16 = k.v()
    k(f"""s_load_dwordx2 s[{sws}:{sws+1}], s[0:1], 72
          s_load_dwordx2 s[{sio}:{sio+1}], s[0:1], {56 if down else 0}
          s_cmp_ge_u32 s2, 256
          s_cbranch_scc1 {Lend}
          s_and_b32 s{smt}, s2, 7
          s_lshl_b32 s{smt}, s{smt}, 2
          s_bfe_u32 s{st0}, s2, 0x20003
          s_add_u32 s{smt}, s{smt}, s{st0}
          s_lshr_b32 s{sct}, s2, 5""")
    wave_id(k, sw, vl)
    k(f"""v_lshlrev_b32 v{v16}, 4, v{vl}
          s_waitcnt lgkmcnt(0)""")
    dws = k.srd(sws, WS_SIZE); D = f"s[{dws}:{dws+3}]"
    srem = k.s(); sstart = k.s()
    if ROT:
        k(f"""s_bfe_u32 s{st0}, s2, 0x20003
              s_lshl_b32 s{st0}, s{st0}, 1
              s_add_u32 s{st0}, s{st0}, s{sct}
              s_and_b32 s{st0}, s{st0}, 7
              s_mul_i32 s{st0}, s{st0}, {NST}
              s_lshr_b32 s{sstart}, s{st0}, 3""")
    else: k(f"s_mov_b32 s{sstart}, 0")
    k(f"s_sub_u32 s{srem}, {NST}, s{sstart}")
    k(f"""s_cmp_lt_u32 s{sw}, 4
          s_cbranch_scc1 {Lc}""")
    m = k.vmark()
    v16b = k.v(); so, sm0, c20 = k.s(), k.s(), k.s()
    k(f's_mov_b32 s{c20}, 20480')
    k(f"""s_sub_u32 s{st0}, s{sw}, 4
          s_mul_i32 s{sm0}, s{st0}, 5120
          s_mul_i32 s{so}, s{sct}, {NS*5120}
          s_add_u32 s{so}, s{so}, s{sm0}
          s_add_u32 s{so}, s{so}, {WBASE}
          s_mul_i32 s{st0}, s{sstart}, 20480
          s_add_u32 s{so}, s{so}, s{st0}
          v_add_u32 v{v16b}, 4096, v{v16}""")
    def issue(stage):
        slot = stage % NSLOT
        k(f"""s_add_u32 m0, s{sm0}, {slot*20480}
              s_nop 0""")
        for p in range(4):
            k(f"buffer_load_dwordx4 v{v16}, {D}, s{so} offen offset:{p*1024} lds")
        k(f"""s_add_u32 m0, s{sm0}, {slot*20480+4096}
              s_nop 0
              buffer_load_dwordx4 v{v16b}, {D}, s{so} offen lds
              s_sub_u32 s{srem}, s{srem}, 1
              s_cmp_eq_u32 s{srem}, 0
              s_cselect_b32 s{st0}, {(20480 - NST*20480) & 0xffffffff}, s{c20}
              s_add_u32 s{so}, s{so}, s{st0}""")
    loader_loop(k, issue, NST, NSLOT, LA, 5)
    k.end()
    k.vrelease(m)
    k(f"{Lc}:")
    sa = k.s(); srow = k.s(); c4 = k.s(); stw = k.s()
    acc = [k.v(4, 4) for _ in range(5)]
    W = [[k.v(4, 4) for _ in range(5)] for _ in range(2)]
    res = k.v(12, 4)
    t = [k.v() for _ in range(6)]
    vrm, vhf = k.v(), k.v()
    AD = min(NS, AD)
    A = [k.a(4, 4) for _ in range(AD)]
    A = [A[i % AD] for i in range(NS)]
    k(f"""s_lshl_b32 s{srow}, s{smt}, 2
          s_add_u32 s{srow}, s{srow}, s{sw}
          s_mul_i32 s{sa}, s{srow}, {ASTRIDE}
          s_add_u32 s{sa}, s{sa}, {ABASE}
          s_lshl_b32 s{st0}, s{sstart}, 12
          s_add_u32 s{sa}, s{sa}, s{st0}
          s_movk_i32 s{c4}, 4096""")
    def aload(s):
        k(f"buffer_load_dwordx4 {ar(A[s],4)}, v{v16}, {D}, s{sa} offen offset:{(s&3)*1024}")
        if (s & 3) == 3 and s != NS-1:
            k(f"""s_sub_u32 s{srem}, s{srem}, 1
                  s_cmp_eq_u32 s{srem}, 0
                  s_cselect_b32 s{stw}, {(4096 - NST*4096) & 0xffffffff}, s{c4}
                  s_add_u32 s{sa}, s{sa}, s{stw}""")
    for s in range(8): aload(s)
    dio = k.srd(sio, 2048*1280); IO = f"s[{dio}:{dio+3}]"
    k(f"""v_and_b32 v{t[0]}, 15, v{vl}
          v_lshrrev_b32 v{t[1]}, 4, v{vl}
          s_lshl_b32 s{st0}, s{srow}, 4
          v_add_u32 v{t[2]}, s{st0}, v{t[0]}
          v_mul_u32_u24 v{t[3]}, 1280, v{t[2]}
          s_mul_i32 s{st0}, s{sct}, 160
          v_add_u32 v{t[3]}, s{st0}, v{t[3]}
          v_lshl_add_u32 v{vrm}, v{t[1]}, 4, v{t[3]}
          v_lshl_add_u32 v{t[3]}, v{t[1]}, 3, v{t[3]}
          s_lshr_b32 s{st0}, s{srow}, 1
          s_mul_i32 s{st0}, s{st0}, 40960
          s_and_b32 s{st1}, s{srow}, 1
          s_lshl_b32 s{st1}, s{st1}, 8
          s_add_u32 s{st0}, s{st0}, s{st1}
          s_mul_i32 s{st1}, s{sct}, 5120
          s_add_u32 s{st0}, s{st0}, s{st1}
          s_add_u32 s{st0}, s{st0}, {HF}
          v_lshl_add_u32 v{t[0]}, v{t[0]}, 4, s{st0}
          v_lshl_add_u32 v{vhf}, v{t[1]}, 9, v{t[0]}
          v_lshrrev_b32 v{t[4]}, 1, v{t[1]}
          v_lshl_add_u32 v{t[0]}, v{t[4]}, 9, v{t[0]}
          v_and_b32 v{t[1]}, 1, v{t[1]}
          v_lshl_add_u32 v{t[0]}, v{t[1]}, 3, v{t[0]}
          v_add_u32 v{t[0]}, 4096, v{t[0]}""")
    vrm2, vhf2, vR = t[3], t[0], t[2]
    for s in range(8, AD): aload(s)
    if down:
        k(f"""buffer_load_dwordx4 {vr(res,4)}, v{vhf}, {D}, 0 offen
              buffer_load_dwordx4 {vr(res+4,4)}, v{vhf}, {D}, 0 offen offset:2048
              buffer_load_dwordx2 {vr(res+8,2)}, v{vhf2}, {D}, 0 offen""")
    else:
        k(f"""buffer_load_dwordx4 {vr(res,4)}, v{vrm}, {IO}, 0 offen
              buffer_load_dwordx4 {vr(res+4,4)}, v{vrm}, {IO}, 0 offen offset:64
              buffer_load_dwordx2 {vr(res+8,2)}, v{vrm2}, {IO}, 0 offen offset:128""")
    vb = [k.v() for _ in range((NSLOT*20480 + 61439)//61440)]
    for i, r in enumerate(vb):
        k(f"v_add_u32 v{r}, {i*61440}, v{v16}")
    def wread(s):
        off = ((s//4) % NSLOT)*20480 + (s & 3)*5120
        for j in range(5):
            k(f"ds_read_b128 {vr(W[s&1][j],4)}, v{vb[off//61440]} offset:{off%61440 + j*1024}")
    k.stamp(1); k("s_barrier"); k.stamp(2)
    wread(0)
    for s in range(NS):
        last_in_stage = (s & 3) == 3
        vm = (AD-1-s) + 3 + min(s, NS-AD) if s < AD else min(AD-1, NS-1-s)
        if s+1 < NS and not last_in_stage:
            wread(s+1)
            k(f"s_waitcnt vmcnt({vm}) lgkmcnt(5)")
        else:
            k(f"s_waitcnt vmcnt({vm}) lgkmcnt(0)")
            if s+1 < NS:
                k("s_barrier")
                wread(s+1)
        for j in range(5):
            c = "0" if s == 0 else vr(acc[j],4)
            k(f"v_mfma_f32_16x16x32_bf16 {vr(acc[j],4)}, {vr(W[s&1][j],4)}, {ar(A[s],4)}, {c}")
        if s + AD < NS: aload(s + AD)
    U = W[0][0]
    k.stamp(3)
    k("s_waitcnt vmcnt(0)")
    for i in range(10):
        k(f"""v_lshlrev_b32 v{U+2*i}, 16, v{res+i}
              v_and_b32 v{U+2*i+1}, 0xffff0000, v{res+i}""")
    for i in range(10):
        k(pk("v_pk_add_f32", U+2*i, (U+2*i,'p'), (acc[0]+2*i,'p')))
    for i in range(10):
        k(f"v_cvt_pk_bf16_f32 v{res+i}, v{U+2*i}, v{U+2*i+1}")
    if down:
        k(f"""buffer_store_dwordx4 {vr(res,4)}, v{vrm}, {IO}, 0 offen
              buffer_store_dwordx4 {vr(res+4,4)}, v{vrm}, {IO}, 0 offen offset:64
              buffer_store_dwordx2 {vr(res+8,2)}, v{vrm2}, {IO}, 0 offen offset:128""")
    else:
        k(f"""buffer_store_dwordx4 {vr(res,4)}, v{vhf}, {D}, 0 offen
              buffer_store_dwordx4 {vr(res+4,4)}, v{vhf}, {D}, 0 offen offset:2048
              buffer_store_dwordx2 {vr(res+8,2)}, v{vhf2}, {D}, 0 offen
              s_mov_b32 s{st1}, {hex(ONES)}
              v_mov_b32 v{t[4]}, 0
              v_mov_b32 v{t[5]}, 0""")
        for i in range(10):
            k(f"""v_dot2c_f32_bf16 v{t[4]}, s{st1}, v{res+i}
                  v_dot2c_f32_bf16 v{t[5]}, v{res+i}, v{res+i}""")
        k(f"""s_lshl_b32 s{st0}, s{sct}, 3
              s_add_u32 s{st0}, s{st0}, {STATS}
              v_lshlrev_b32 v{vR}, 6, v{vR}
              v_lshrrev_b32 v{t[1]}, 5, v{vl}
              v_permlane32_swap_b32 v{t[4]}, v{t[5]}
              v_lshl_add_u32 v{vR}, v{t[1]}, 2, v{vR}
              s_nop 0
              v_add_f32 v{t[4]}, v{t[4]}, v{t[5]}
              v_mov_b32 v{t[5]}, v{t[4]}
              s_nop 1
              v_permlane16_swap_b32 v{t[4]}, v{t[5]}
              s_nop 1
              v_add_f32 v{t[4]}, v{t[4]}, v{t[5]}
              buffer_store_dword v{t[4]}, v{vR}, {D}, s{st0} offen""")
    k.end()
    k(f"{Lend}:\ns_endpgm")
    return k
```

```python
from common import *
def gen_k4(LA=4, ROT=0):
    NSLOT = LA+2
    NST = 20
    CS = NSLOT*20480
    k = Kern("k4_gateup_kernel", 256, 512, CS + 1024)
    sws = k.s(2); sw, smt, snt, st0, st1 = [k.s() for _ in range(5)]
    Lend = k.lab("end"); Lc = k.lab("comp")
    vl = k.v(); v16 = k.v()
    k(f"""s_load_dwordx2 s[{sws}:{sws+1}], s[0:1], 72
          s_cmp_ge_u32 s2, 256
          s_cbranch_scc1 {Lend}
          s_and_b32 s{smt}, s2, 1
          s_lshl_b32 s{smt}, s{smt}, 3
          s_bfe_u32 s{st0}, s2, 0x30003
          s_add_u32 s{smt}, s{smt}, s{st0}
          s_bfe_u32 s{snt}, s2, 0x20001
          s_lshl_b32 s{snt}, s{snt}, 2
          s_lshr_b32 s{st0}, s2, 6
          s_add_u32 s{snt}, s{snt}, s{st0}""")
    wave_id(k, sw, vl)
    k(f"""v_lshlrev_b32 v{v16}, 4, v{vl}
          s_waitcnt lgkmcnt(0)""")
    dws = k.srd(sws, WS_SIZE); D = f"s[{dws}:{dws+3}]"
    k(f"""s_cmp_lt_u32 s{sw}, 4
          s_cbranch_scc1 {Lc}""")
    m = k.vmark()
    soA, soW, smA, smW, slw, srem, cA, cW = [k.s() for _ in range(8)]
    c = k.v(8); va = k.v()
    k(f"""s_sub_u32 s{slw}, s{sw}, 4
          s_lshl_b32 s{st0}, s{smt}, 2
          s_add_u32 s{st0}, s{st0}, s{slw}
          s_mul_i32 s{soA}, s{st0}, 40960
          s_add_u32 s{soA}, s{soA}, {HF}
          s_lshl_b32 s{smA}, s{slw}, 11
          s_mul_i32 s{smW}, s{slw}, 3072
          s_mul_i32 s{soW}, s{snt}, 245760
          s_add_u32 s{soW}, s{soW}, s{smW}
          s_add_u32 s{soW}, s{soW}, {WGUF}
          s_add_u32 s{smW}, s{smW}, 8192
          s_movk_i32 s{cA}, 2048
          s_movk_i32 s{cW}, 12288""")
    if ROT:
        k(f"""s_lshr_b32 s{st0}, s2, 6
              s_lshl_b32 s{st0}, s{st0}, 1
              s_lshr_b32 s{st1}, s2, 3
              s_add_u32 s{st0}, s{st0}, s{st1}
              s_and_b32 s{st0}, s{st0}, 7
              s_mul_i32 s{st0}, s{st0}, {NST}
              s_lshr_b32 s{st0}, s{st0}, 3""")
    else: k(f"s_mov_b32 s{st0}, 0")
    k(f"""s_sub_u32 s{srem}, {NST}, s{st0}
          s_lshl_b32 s{st1}, s{st0}, 11
          s_add_u32 s{soA}, s{soA}, s{st1}
          s_mul_i32 s{st1}, s{st0}, 12288
          s_add_u32 s{soW}, s{soW}, s{st1}""")
    def issue(stage):
        slot = stage % NSLOT
        k(f"""s_add_u32 m0, s{smA}, {slot*20480}
              s_nop 0""")
        for p in range(2):
            k(f"buffer_load_dwordx4 v{v16}, {D}, s{soA} offen offset:{p*1024} lds")
        k(f"""s_add_u32 m0, s{smW}, {slot*20480}
              s_sub_u32 s{srem}, s{srem}, 1""")
        for p in range(3):
            k(f"buffer_load_dwordx4 v{v16}, {D}, s{soW} offen offset:{p*1024} lds")
        k(f"""s_cmp_eq_u32 s{srem}, 0
              s_cselect_b32 s{st0}, {(2048 - NST*2048) & 0xffffffff}, s{cA}
              s_cselect_b32 s{st1}, {(12288 - NST*12288) & 0xffffffff}, s{cW}
              s_add_u32 s{soA}, s{soA}, s{st0}
              s_add_u32 s{soW}, s{soW}, s{st1}""")
    CSAT = 4
    def hook(s):
        if s == CSAT:
            k(f"""s_lshl_b32 s{st0}, s{slw}, 8
                  v_lshl_add_u32 v{va}, v{vl}, 2, s{st0}
                  s_mul_i32 s{st0}, s{snt}, 768
                  s_add_u32 s{st0}, s{st0}, {CSG}""")
            for p in range(8):
                k(f"buffer_load_dword v{c+p}, v{va}, {D}, s{st0} offen")
                if p < 7: k(f"s_add_u32 s{st0}, s{st0}, {96*128}")
        if s == CSAT+LA+1:
            for p in range(1, 8): k(f"v_add_f32 v{c}, v{c}, v{c+p}")
            k(f"""v_add_u32 v{va}, {CS}, v{va}
                  ds_write_b32 v{va}, v{c}
                  s_waitcnt lgkmcnt(0)""")
    loader_loop(k, issue, NST, NSLOT, LA, 5, extra=lambda s, issued: 8 if CSAT < s <= CSAT+LA else 0, hook=hook)
    k.end()
    k.vrelease(m)
    k(f"{Lc}:")
    swm, swn, sslot, scnt = [k.s() for _ in range(4)]
    acc = [[k.v(16, 4) for f in range(3)] for tf in range(2)]
    X = [[k.v(4, 4) for tf in range(2)] for _ in range(2)]
    W = [[k.v(4, 4) for f in range(3)] for _ in range(2)]
    pad = k.v(8, 4)
    ST = [k.v(8, 4) for tf in range(2)]
    ns = [k.v(2) for tf in range(2)]
    t = [k.v() for _ in range(4)]
    aX, aW, bX, bW, vo = [k.v() for _ in range(5)]
    k(f"""s_lshr_b32 s{swm}, s{sw}, 1
          s_and_b32 s{swn}, s{sw}, 1
          v_and_b32 v{t[0]}, 31, v{vl}
          v_lshrrev_b32 v{t[1]}, 5, v{vl}
          v_lshlrev_b32 v{t[2]}, 6, v{t[0]}
          v_lshl_add_u32 v{t[2]}, v{t[1]}, 5, v{t[2]}
          s_lshl_b32 s{st0}, s{smt}, 1
          s_add_u32 s{st0}, s{st0}, s{swm}
          s_lshl_b32 s{st1}, s{st0}, 12
          s_add_u32 s{st1}, s{st1}, {STATS}""")
    for tf in range(2):
        for h in range(2):
            k(f"buffer_load_dwordx4 {vr(ST[tf]+4*h,4)}, v{t[2]}, {D}, s{st1} offen offset:{tf*2048+h*16}")
    k(f"""s_mul_i32 s{st0}, s{st0}, {4*49152}
          s_mul_i32 s{st1}, s{snt}, {6*512}
          s_add_u32 s{st0}, s{st0}, s{st1}
          s_mul_i32 s{st1}, s{swn}, {3*512}
          s_add_u32 s{st0}, s{st0}, s{st1}
          s_add_u32 s{st0}, s{st0}, {HHF}
          v_lshrrev_b32 v{t[2]}, 4, v{t[0]}
          v_mul_u32_u24 v{t[2]}, 49152, v{t[2]}
          v_and_b32 v{t[0]}, 15, v{t[0]}
          v_lshl_add_u32 v{t[2]}, v{t[0]}, 4, v{t[2]}
          v_lshl_add_u32 v{t[2]}, v{t[1]}, 8, v{t[2]}
          v_add_u32 v{vo}, s{st0}, v{t[2]}
          s_lshl_b32 s{st0}, s{swm}, 12
          v_add_u32 v{bX}, s{st0}, v{v16}
          s_mul_i32 s{st0}, s{swn}, 3072
          s_add_u32 s{st0}, s{st0}, 8192
          v_add_u32 v{bW}, s{st0}, v{v16}
          v_mov_b32 v{aX}, v{bX}
          v_mov_b32 v{aW}, v{bW}""")
    for tf in range(2):
        for f in range(3):
            for r in range(16): k(f"v_mov_b32 v{acc[tf][f]+r}, 0")
    k("s_waitcnt vmcnt(0)")
    for tf in range(2):
        s_ = ST[tf]
        k(pk("v_pk_add_f32", s_, (s_,'p'), (s_+2,'p'))); k(pk("v_pk_add_f32", s_+4, (s_+4,'p'), (s_+6,'p')))
        k(pk("v_pk_add_f32", s_, (s_,'p'), (s_+4,'p')))
        k(f"""v_mov_b32 v{s_+2}, v{s_}
              v_mov_b32 v{s_+3}, v{s_+1}
              s_nop 0
              v_permlane32_swap_b32 v{s_}, v{s_+2}
              v_permlane32_swap_b32 v{s_+1}, v{s_+3}
              s_nop 1""")
        k(pk("v_pk_add_f32", s_, (s_,'p'), (s_+2,'p')))
        ln_scalars(k, s_, s_+1, s_+2, s_+3, ns[tf], ns[tf]+1)
        k(f"v_mul_f32 v{ns[tf]+1}, v{ns[tf]+1}, v{ns[tf]+1}")
    def reads(st, ks):
        for tf in range(2):
            k(f"ds_read_b128 {vr(X[st][tf],4)}, v{aX} offset:{tf*2048+ks*1024}")
        for f in range(3):
            k(f"ds_read_b128 {vr(W[st][f],4)}, v{aW} offset:{ks*6144+f*1024}")
    def mm(st):
        for f in range(3):
            for tf in range(2):
                k(f"v_mfma_f32_32x32x16_bf16 {vr(acc[tf][f],16)}, {vr(W[st][f],4)}, {vr(X[st][tf],4)}, {vr(acc[tf][f],16)}")
    Lloop = k.lab("loop"); Llast = k.lab("last")
    k(f"""s_mov_b32 s{sslot}, 0
          s_mov_b32 s{scnt}, {NST}""")
    k.stamp(1); k("s_barrier"); k.stamp(2)
    reads(0, 0)
    k(f"{Lloop}:")
    reads(1, 1)
    k(f"""s_add_u32 s{sslot}, s{sslot}, 20480
          s_cmp_eq_u32 s{sslot}, {NSLOT*20480}
          s_cselect_b32 s{sslot}, 0, s{sslot}
          s_sub_u32 s{scnt}, s{scnt}, 1
          s_waitcnt lgkmcnt(5)""")
    mm(0)
    k(f"""v_add_u32 v{aX}, s{sslot}, v{bX}
          v_add_u32 v{aW}, s{sslot}, v{bW}
          s_waitcnt lgkmcnt(0)
          s_cmp_eq_u32 s{scnt}, 0
          s_cbranch_scc1 {Llast}
          s_barrier""")
    reads(0, 0)
    mm(1)
    k(f"s_branch {Lloop}")
    k(f"{Llast}:")
    mm(1)
    k.stamp(3)
    csr = X[0][0]
    assert pad + 8 - csr == 48
    k(f"""s_mul_i32 s{st0}, s{swn}, 384
          s_add_u32 s{st0}, s{st0}, {CS}
          v_lshl_add_u32 v{t[0]}, v{t[1]}, 4, s{st0}
          s_nop 7""")
    for f in range(3):
        for g in range(4):
            k(f"ds_read_b128 {vr(csr+f*16+g*4,4)}, v{t[0]} offset:{f*128+g*32}")
    for f in range(3):
        k(f"s_waitcnt lgkmcnt({8-4*f})")
        for tf in range(2):
            a = acc[tf][f]
            for r in range(0, 16, 2):
                k(pk("v_pk_fma_f32", a+r, (csr+f*16+r,'p'), (ns[tf],'l'), (a+r,'p')))
            for r in (0, 2, 8, 10):
                k(pk("v_pk_mul_f32", a+r, (a+r,'p'), (ns[tf],'h')))
            for r in (0, 2, 8, 10):
                k(pk("v_pk_mul_f32", a+r, (a+r,'p'), (a+r+4,'p')))
            for i, r in enumerate((0, 2, 8, 10)):
                k(f"v_cvt_pk_bf16_f32 v{a+4+i}, v{a+r}, v{a+r+1}")
            if tf == 1: k(f"s_mov_b32 s{st1}, {2*49152}")
            k(f"buffer_store_dwordx4 {vr(a+4,4)}, v{vo}, {D}, {'0' if tf==0 else 's%d'%st1} offen offset:{f*512}")
    k.end()
    k(f"{Lend}:\ns_endpgm")
    return k
```

```python
import sys, os, json
from common import *
from k1 import gen_k1
from k2 import gen_k2
from k35 import gen_k35
from k4 import gen_k4
NAME = "sequential_preLN__mha_block__glu_gated_bilinear__prompt"
def build(path, P={}):
    Kern.count = 0
    ks = [gen_k1(**P.get("k1", {})), gen_k2(**P.get("k2", {})), gen_k35(False, **P.get("k3", {})), gen_k4(**P.get("k4", {})), gen_k35(True, **P.get("k5", {}))]
    txt = assemble_file(ks, ks, "; generated by gen/gen.py (own generator)\n")
    open(path, "w").write(txt)
    for k in ks: print(k.name, "vgpr", k.maxv, "agpr", k.na, "sgpr", k.maxs, "lines", len(k.L))
if __name__ == "__main__":
    build(sys.argv[1] if len(sys.argv) > 1 else f"cdna_kernels/{NAME}.s", json.loads(sys.argv[2]) if len(sys.argv) > 2 else {})
```
